```python
import torch

def _softmax(x, axis=-1):
    return torch.softmax(x, dim=axis)
def _gelu(x):
    return torch.nn.functional.gelu(x, approximate="tanh")
def _silu(x):
    return torch.nn.functional.silu(x)
def _sigmoid(x):
    return torch.sigmoid(x)
def _layernorm(x, axis=-1, eps=1e-5):
    m = x.mean(dim=axis, keepdim=True)
    v = x.var(dim=axis, keepdim=True, unbiased=False)
    return (x - m) / torch.sqrt(v + eps)
def _scatter_add(tgt, idx, src, axis=0):
    return tgt.clone().index_add_(axis, idx, src)
def _segment_sum(src, seg, n):
    out = torch.zeros((n,) + src.shape[1:], dtype=src.dtype)
    return out.index_add_(0, seg, src)
def _pad(x, pw):
    flat = tuple(v for pair in reversed(pw) for v in pair)
    return torch.nn.functional.pad(x, flat)

kernel_name = 'sequential_preLN__ssm_conv_h3__dense_activation_relu__prompt'

def setup_inputs():

    _w = (lambda a: (lambda t: t.to(torch.bfloat16) if t.is_floating_point() else t)(torch.as_tensor(a)))
    def _A_setup():
        B, S, D = 1, 2048, 576
        ks = 4
        return {
            "q": _w((lambda *s: torch.randn(*s, dtype=torch.bfloat16) * 0.05)(B, S, D)),
            "k": _w((lambda *s: torch.randn(*s, dtype=torch.bfloat16) * 0.4)(B, S, D)),
            "v": _w((lambda *s: torch.randn(*s, dtype=torch.bfloat16) * 0.4)(B, S, D)),
            "shift_k": _w((lambda *s: torch.randn(*s, dtype=torch.bfloat16) * 0.4)(D, ks) * 0.5),
            "ssm_k": _w((lambda *s: torch.randn(*s, dtype=torch.bfloat16) * 0.4)(D, S) * (1.0 / S ** 0.5)),
            "ssm_D": _w((lambda *s: torch.randn(*s, dtype=torch.bfloat16) * 0.4)(D)),
        }
    _A_in = _A_setup()

    def _B_setup():
        B, S, D, Dff = 1, 2048, 576, 4608
        return {
            "x": _w((lambda *s: torch.randn(*s, dtype=torch.bfloat16) * 0.05)(B, S, D)),
            "w1": _w((lambda *s: torch.randn(*s, dtype=torch.bfloat16) * 0.05)(D, Dff)),
            "w2": _w((lambda *s: torch.randn(*s, dtype=torch.bfloat16) * 0.05)(Dff, D)),
        }
    _B_in = _B_setup()

    return {
        "A_q": _A_in["q"],
        "A_k": _A_in["k"],
        "A_v": _A_in["v"],
        "A_shift_k": _A_in["shift_k"],
        "A_ssm_k": _A_in["ssm_k"],
        "A_ssm_D": _A_in["ssm_D"],
        "B_x": _B_in["x"],
        "B_w1": _B_in["w1"],
        "B_w2": _B_in["w2"],
    }

def reference(A_q, A_k, A_v, A_shift_k, A_ssm_k, A_ssm_D, B_x, B_w1, B_w2):
    def _A_ref(q, k, v, shift_k, ssm_k, ssm_D):
        B, S, D = q.shape
        ks = shift_k.shape[-1]
        k_pad = _pad(k, ((0, 0), (ks - 1, 0), (0, 0)))
        k_shift = torch.zeros_like(k)
        for t in range(ks):
            k_shift = k_shift + k_pad[:, t:t + S, :] * shift_k[:, ks - 1 - t][None, None, :]
        kv = k_shift * v
        L = 2 * S
        kv_pad = _pad(kv, ((0, 0), (0, S), (0, 0)))
        kf_pad = _pad(ssm_k, ((0, 0), (0, S)))
        kv_f = (lambda x, axes=(-2,-1): torch.fft.rfft2(x.float(), dim=axes))(kv_pad[:, None, :, :], axes=(1, 2))
        kf_f = (lambda x, axes=(-2,-1): torch.fft.rfft2(x.float(), dim=axes))(kf_pad[:, None, :], axes=(1, 2))
        kf_f = (lambda x, *d: x.permute(*d))(kf_f, 1, 2, 0)
        y_f = kv_f * kf_f[None, :, :, :]
        y = (lambda x, s, axes=(-2,-1): torch.fft.irfft2(x, s=s, dim=axes).to(torch.bfloat16))(y_f, (1, L), axes=(1, 2))[:, 0, :S, :]
        y = y + kv * ssm_D[None, None, :]
        return q * y

    def _B_ref(x, w1, w2):
        h = torch.einsum("bsd,df->bsf", x, w1)
        zero = torch.zeros_like(h)
        h = torch.maximum(h, zero)
        return torch.einsum("bsf,fd->bsd", h, w2)

    x = A_q
    h = x + _A_ref(_layernorm(x, axis=-1), A_k, A_v, A_shift_k, A_ssm_k, A_ssm_D)
    h2 = h + _B_ref(_layernorm(h, axis=-1), B_w1, B_w2)
    return h2
```

```python
import re

TRANS = ("v_exp_f32", "v_log_f32", "v_rcp_f32", "v_rsq_f32", "v_sqrt_f32", "v_sin_f32", "v_cos_f32",
         "v_rcp_iflag_f32")

REG_RE = re.compile(r"^(-?)(abs\()?([vas])(?:\[(\d+):(\d+)\]|(\d+))\)?$")


def parse_reg(tok):
    tok = tok.strip()
    if tok in ("vcc", "vcc_lo", "vcc_hi"):
        return {("vcc", 0)}
    if tok in ("exec", "exec_lo", "exec_hi"):
        return {("exec", 0)}
    if tok == "m0":
        return {("m0", 0)}
    m = REG_RE.match(tok)
    if not m:
        return set()
    k = m.group(3)
    if m.group(4) is not None:
        return {(k, i) for i in range(int(m.group(4)), int(m.group(5)) + 1)}
    return {(k, int(m.group(6)))}


def split_ops(s):
    out, depth, cur = [], 0, ""
    for ch in s:
        if ch in "[(":
            depth += 1
        if ch in "])":
            depth -= 1
        if ch == "," and depth == 0:
            out.append(cur.strip())
            cur = ""
        else:
            cur += ch
    if cur.strip():
        out.append(cur.strip())
    return out


class Ins:
    __slots__ = ("text", "op", "ops", "mods", "rd", "wr", "cls", "passes", "label", "target", "srcC", "srcAB",
                 "dpp", "states", "store_data", "lds_dma")

    def __init__(self, text):
        self.text = text
        self.label = None
        self.target = None
        self.rd, self.wr = set(), set()
        self.srcC, self.srcAB = set(), set()
        self.cls = "other"
        self.passes = 0
        self.dpp = False
        self.states = 1
        self.store_data = set()
        self.lds_dma = False
        t = text.split(";")[0].strip()
        if t.endswith(":"):
            self.label = t[:-1]
            self.op = None
            self.states = 0
            return
        parts = t.split(None, 1)
        self.op = op = parts[0]
        rest = parts[1] if len(parts) > 1 else ""
        ops = split_ops(rest)
        mods = ""
        if ops:
            last = ops[-1].split()
            if len(last) > 1 and not op.startswith("s_waitcnt"):
                ops[-1] = last[0]
                mods = " ".join(last[1:])
        self.ops, self.mods = ops, mods
        R = [parse_reg(o) for o in ops]

        def U(lst):
            s = set()
            for x in lst:
                s |= x
            return s

        if op.startswith("v_mfma"):
            self.cls = "mfma"
            self.passes = {"16x16x32": 4, "32x32x16": 8, "16x16x16": 4, "32x32x8": 8}[op.split("_")[3]]
            self.wr = R[0]
            self.srcAB = R[1] | R[2]
            self.srcC = R[3]
            self.rd = self.srcAB | self.srcC | {("exec", 0)}
        elif op.startswith("v_"):
            self.cls = "valu"
            self.dpp = any(k in mods for k in ("quad_perm", "row_", "wave_")) or op.endswith("_dpp")
            if op.startswith("v_cmpx"):
                self.wr = R[0] | {("exec", 0)}
                self.rd = U(R[1:])
            elif op.startswith("v_cmp"):
                self.wr = R[0]
                self.rd = U(R[1:])
            elif op.startswith("v_permlane") and "swap" in op:
                self.wr = R[0] | R[1]
                self.rd = R[0] | R[1]
            elif "_co_" in op:
                self.wr = R[0] | R[1]
                self.rd = U(R[2:])
            else:
                self.wr = R[0]
                self.rd = U(R[1:])
                if op.startswith(("v_fmac", "v_mac", "v_dot2c", "v_pk_fmac", "v_writelane")) or self.dpp:
                    self.rd |= R[0]
                if op.startswith("v_cndmask") and len(ops) == 3:
                    self.rd |= {("vcc", 0)}
            self.rd |= {("exec", 0)}
        elif op.startswith("ds_"):
            self.cls = "ds"
            if op.startswith(("ds_read", "ds_bpermute", "ds_permute", "ds_swizzle")):
                self.wr = R[0]
                self.rd = U(R[1:])
            else:
                self.rd = U(R)
        elif op.startswith(("buffer_", "global_")):
            self.cls = "vmem"
            is_lds = (" lds" in " " + mods) or "_lds_" in op
            self.lds_dma = is_lds
            if is_lds:
                self.rd = U(R) | {("m0", 0)}
            elif "store" in op:
                self.rd = U(R)
                d = R[0] if op.startswith("buffer_") else R[1]
                if op.endswith(("x3", "x4")):
                    self.store_data = d
            elif "atomic" in op:
                self.rd = U(R)
                if "sc0" in mods:
                    self.wr = R[0]
            elif op.startswith(("buffer_inv", "buffer_wbl2")):
                pass
            else:
                self.wr = R[0]
                self.rd = U(R[1:])
        elif op.startswith("s_"):
            self.cls = "salu"
            if op == "s_nop":
                self.states = int(ops[0], 0) + 1
            elif op.startswith(("s_branch", "s_cbranch")):
                self.target = ops[0]
                self.cls = "branch"
            elif op.startswith(("s_cmp", "s_waitcnt", "s_barrier", "s_endpgm", "s_setprio", "s_sleep", "s_bitcmp")):
                self.rd = U(R)
            elif op.startswith(("s_load", "s_buffer_load")):
                self.cls = "smem"
                self.wr = R[0]
                self.rd = U(R[1:])
            else:
                self.wr = R[0]
                self.rd = U(R[1:])
                if "saveexec" in op:
                    self.wr |= {("exec", 0)}
                    self.rd |= {("exec", 0)}
                if op in ("s_addk_i32", "s_mulk_i32"):
                    self.rd |= R[0]
        else:
            raise ValueError("unknown instruction: " + text)


def vregs(s):
    return {x for x in s if x[0] in ("v", "a")}


def sregs(s):
    return {x for x in s if x[0] in ("s", "vcc")}


def required(p, c):
    need = 0
    if p.cls == "mfma":
        D = p.wr
        big = {2: 5, 4: 8, 8: 12, 16: 20}[p.passes]
        if c.cls == "mfma":
            if c.srcAB & D:
                need = max(need, big)
            if c.srcC & D:
                if c.srcC == D and c.passes == p.passes:
                    need = max(need, 2 if p.passes == 2 else 0)
                else:
                    need = max(need, {2: 4, 4: 6, 8: 10, 16: 18}[p.passes])
            if (c.wr & D) and not (c.srcC & D):
                need = max(need, {2: 4, 4: 6, 8: 10, 16: 18}[p.passes])
        elif c.cls in ("valu", "ds", "vmem"):
            if (c.rd | c.wr) & D:
                need = max(need, big)
        if c.cls == "valu" and (c.wr & p.srcC):
            need = max(need, {2: 1, 4: 3, 8: 7, 16: 15}[p.passes])
        if c.cls in ("ds", "vmem") and (c.wr & p.srcC):
            need = max(need, {2: 1, 4: 3, 8: 7, 16: 15}[p.passes])
    if p.cls == "valu":
        wv = vregs(p.wr)
        ws = sregs(p.wr)
        if c.cls == "mfma":
            if wv & c.rd:
                need = max(need, 2)
            if ("exec", 0) in p.wr:
                need = max(need, 4)
        if c.cls == "vmem" and (ws & c.rd):
            need = max(need, 5)
        if c.cls == "valu":
            if ws & c.rd:
                need = max(need, 4 if c.op.startswith(("v_readlane", "v_writelane", "v_div_fmas")) else 2)
            if c.op.startswith(("v_readlane", "v_readfirstlane")) and (wv & c.rd):
                need = max(need, 1)
            if (c.dpp or c.op.startswith("v_permlane")) and (wv & c.rd):
                need = max(need, 2)
            if p.op.split("_e")[0] in TRANS and (wv & c.rd) and c.op.split("_e")[0] not in TRANS:
                need = max(need, 1)
            if ("exec", 0) in p.wr:
                if c.dpp:
                    need = max(need, 5)
                if c.op.startswith(("v_readlane", "v_readfirstlane", "v_writelane", "v_permlane")):
                    need = max(need, 4)
            if ("op_sel" in p.mods or "sdwa" in p.op) and not p.op.startswith("v_pk_") and (wv & (c.rd | c.wr)):
                need = max(need, 1)
        if c.cls in ("salu", "branch", "smem") and (ws & c.rd):
            need = max(need, 1)
        if c.cls == "branch" and c.op in ("s_cbranch_vccz", "s_cbranch_vccnz") and ("vcc", 0) in p.wr:
            need = max(need, 5)
        if c.cls == "branch" and c.op in ("s_cbranch_execz", "s_cbranch_execnz") and ("exec", 0) in p.wr:
            need = max(need, 5)
    if p.cls == "salu" and ("m0", 0) in p.wr and (c.lds_dma or (c.op or "").endswith("addtid_b32")):
        need = max(need, 1)
    if p.cls == "vmem" and p.store_data:
        if c.cls == "valu" and (c.wr & p.store_data):
            need = max(need, 2)
        elif c.wr & p.store_data:
            need = max(need, 1)
    return need


class Kernel:
    def __init__(self, name, vgprs=256, agprs=0, sgprs=102, wg_y=False):
        self.name = name
        self.lines = []
        self.vgprs, self.agprs, self.sgprs = vgprs, agprs, sgprs
        self.nlabel = 0

    def __call__(self, s):
        for l in s.strip().split("\n"):
            l = l.strip()
            if l and not l.startswith(";"):
                self.lines.append(l)

    def label(self, base="L"):
        self.nlabel += 1
        return f"{self.name}_{base}{self.nlabel}"

    def fix_hazards(self, verbose=False):
        ins = [Ins(l) for l in self.lines]
        total_added = 0
        for _round in range(200):
            labels = {x.label: i for i, x in enumerate(ins) if x.label}
            n = len(ins)

            def succ(i):
                x = ins[i]
                out = []
                if x.op == "s_endpgm":
                    return out
                if x.cls == "branch":
                    out.append(labels[x.target])
                    if x.op == "s_branch":
                        return out
                if i + 1 < n:
                    out.append(i + 1)
                return out

            fixes = {}
            for i, p in enumerate(ins):
                if p.label or p.cls not in ("mfma", "valu", "salu", "vmem"):
                    continue
                if p.cls == "salu" and ("m0", 0) not in p.wr:
                    continue
                if p.cls == "vmem" and not p.store_data:
                    continue
                maxd = 20 if p.cls == "mfma" else 5
                stack = [(j, 0) for j in succ(i)]
                seen = {}
                while stack:
                    j, d = stack.pop()
                    if d >= maxd or seen.get(j, 99) <= d:
                        continue
                    seen[j] = d
                    c = ins[j]
                    if not c.label:
                        r = required(p, c)
                        if r > d:
                            fixes[j] = max(fixes.get(j, 0), r - d)
                    for k in succ(j):
                        stack.append((k, d + c.states))
            if not fixes:
                break
            j = min(fixes)
            k = fixes[j]
            if verbose:
                print(f"[{self.name}] pad {k} before: {ins[j].text}")
            ins.insert(j, Ins(f"s_nop {k - 1}"))
            total_added += 1
        else:
            return self._refix(ins, verbose)
        self.lines = [x.text for x in ins]
        return total_added

    def _refix(self, ins, verbose):
        self.lines = [x.text for x in ins]
        return self.fix_hazards(verbose)

    def check_regs(self):
        mv = ma = ms = -1
        for l in self.lines:
            x = Ins(l)
            for k, i in x.rd | x.wr:
                if k == "v":
                    mv = max(mv, i)
                if k == "a":
                    ma = max(ma, i)
                if k == "s":
                    ms = max(ms, i)
        return mv + 1, ma + 1, ms + 1

    def emit(self):
        nv, na, ns = self.check_regs()
        acc_off = max(4, (nv + 3) // 4 * 4)
        nfv = acc_off + na if na else nv
        assert acc_off <= 256 and nfv <= 512, (nv, na)
        assert ns <= 102
        self.stats = (nv, na, ns, nfv)
        body = []
        for l in self.lines:
            body.append(l if l.endswith(":") else "    " + l)
        text = [f".globl {self.name}", ".p2align 8", f".type {self.name},@function", f"{self.name}:"] + body
        desc = [f".amdhsa_kernel {self.name}",
                f"  .amdhsa_next_free_vgpr {nfv}",
                f"  .amdhsa_next_free_sgpr {max(ns, 16)}",
                f"  .amdhsa_accum_offset {acc_off}",
                "  .amdhsa_group_segment_fixed_size 0",
                "  .amdhsa_kernarg_size 96",
                "  .amdhsa_user_sgpr_count 2",
                "  .amdhsa_user_sgpr_kernarg_segment_ptr 1",
                "  .amdhsa_system_sgpr_workgroup_id_x 1",
                "  .amdhsa_float_denorm_mode_32 3",
                ".end_amdhsa_kernel"]
        return "\n".join(text), "\n".join(desc)
```

```python
import os
import sys

sys.path.insert(0, os.path.dirname(os.path.abspath(__file__)))
from asmlib import Kernel

NAME = "sequential_preLN__ssm_conv_h3__dense_activation_relu__prompt"
S, D, F = 2048, 576, 4608
TB = S * D * 2

WS_UR = 0x0
WS_QT = 0x240000
WS_HT = 0x480000
WS_HF = 0x6C0000
WS_M1 = 0x900000
WS_RS1 = 0x902000
WS_C1 = 0x904000
WS_W1F = 0xA00000
WS_W2F = 0xF10000
WS_PART = 0x1500000
WF_BYTES = 288 * 18 * 1024

P_Q, P_K, P_V, P_SK, P_SSM, P_SD, P_X, P_W1, P_W2, P_OUT, P_DBG, P_WS = [16 + 2 * i for i in range(12)]
MASKHI = "0xffff0000"


def load_kernargs(k):
    k("s_load_dwordx16 s[16:31], s[0:1], 0")
    k("s_load_dwordx8 s[32:39], s[0:1], 64")


def srd(k, dst, ptr, nbytes, off=0, soff=None):
    if off or soff is not None:
        if off:
            k(f"s_add_u32 s{dst}, s{ptr}, {hex(off)}")
            k(f"s_addc_u32 s{dst + 1}, s{ptr + 1}, 0")
            if soff is not None:
                k(f"s_add_u32 s{dst}, s{dst}, s{soff}")
                k(f"s_addc_u32 s{dst + 1}, s{dst + 1}, 0")
        else:
            k(f"s_add_u32 s{dst}, s{ptr}, s{soff}")
            k(f"s_addc_u32 s{dst + 1}, s{ptr + 1}, 0")
    else:
        k(f"s_mov_b32 s{dst}, s{ptr}")
        k(f"s_mov_b32 s{dst + 1}, s{ptr + 1}")
    k(f"s_mov_b32 s{dst + 2}, {hex(nbytes)}")
    k(f"s_mov_b32 s{dst + 3}, 0x20000")


def vr(a, n):
    return f"v[{a}:{a + n - 1}]"


def ar(a, n):
    return f"a[{a}:{a + n - 1}]"


def sr(a, n=4):
    return f"s[{a}:{a + n - 1}]"


def unpack(k, lo, hi, src):
    k(f"v_lshlrev_b32 v{lo}, 16, v{src}")
    k(f"v_and_b32 v{hi}, {MASKHI}, v{src}")


def round_pair(k, a, tmp):
    k(f"v_cvt_pk_bf16_f32 v{tmp}, v{a}, v{a + 1}")
    unpack(k, a, a + 1, tmp)


def wprep_role(k, which, s_blk):
    RP = 9216 if which == 1 else 1152
    NKK = 18 if which == 1 else 9
    k("v_lshrrev_b32 v1, 6, v0")
    k("v_and_b32 v2, 63, v0")
    k("v_readfirstlane_b32 s50, v1")
    k("s_waitcnt lgkmcnt(0)")
    if which == 1:
        k(f"s_lshl_b32 s51, s{s_blk}, 7")
        srd(k, 40, P_W1, D * F * 2)
        srd(k, 44, P_WS, WF_BYTES, off=WS_W1F)
        srd(k, 56, P_WS, F * 4, off=WS_C1)
    else:
        k(f"s_and_b32 s62, s{s_blk}, 1")
        k(f"s_lshr_b32 s63, s{s_blk}, 1")
        k(f"s_mul_i32 s52, s63, 7282")
        k("s_lshr_b32 s52, s52, 16")
        k("s_mul_i32 s53, s52, 9")
        k(f"s_sub_u32 s53, s63, s53")
        k(f"s_mul_i32 s51, s52, {576 * 1152}")
        k("s_lshl_b32 s54, s53, 7")
        k("s_add_u32 s51, s51, s54")
        k(f"s_mul_i32 s54, s62, {288 * 1152}")
        k("s_add_u32 s51, s51, s54")
        srd(k, 40, P_W2, D * F * 2)
        srd(k, 44, P_WS, WF_BYTES, off=WS_W2F)
    k("v_lshrrev_b32 v3, 3, v2")
    k(f"v_mul_u32_u24 v3, {RP}, v3")
    k("v_lshrrev_b32 v4, 3, v2")
    k("v_and_b32 v4, 2, v4")
    k("s_and_b32 s54, s50, 1")
    k("s_lshl_b32 s54, s54, 2")
    k("v_or_b32 v4, s54, v4")
    k("v_and_b32 v5, 7, v2")
    k("v_xor_b32 v4, v4, v5")
    k("v_lshl_add_u32 v3, v4, 4, v3")
    k(f"s_mul_i32 s54, s50, {8 * RP}")
    k("s_add_u32 s51, s51, s54")
    k("s_lshl_b32 s55, s50, 10")
    for i in range(NKK):
        k(f"s_add_u32 m0, s55, {i * 4096}")
        k(f"buffer_load_dwordx4 v3, {sr(40)}, s51 offen lds")
        if i != NKK - 1:
            k(f"s_add_u32 s51, s51, {32 * RP}")
    k("v_lshrrev_b32 v4, 4, v2")
    k("v_bfe_u32 v5, v2, 2, 2")
    k("v_and_b32 v6, 3, v2")
    k("v_lshl_add_u32 v7, v4, 3, v5")
    k("v_lshlrev_b32 v7, 7, v7")
    k("v_lshrrev_b32 v8, 1, v5")
    k("v_and_b32 v9, 1, v4")
    k("v_lshl_or_b32 v8, v9, 1, v8")
    if which == 1:
        k("v_xor_b32 v8, s50, v8")
        k("v_lshl_add_u32 v7, v8, 5, v7")
        k("v_lshl_add_u32 v7, v6, 3, v7")
    else:
        k("s_lshr_b32 s54, s50, 1")
        k("s_lshl_b32 s54, s54, 2")
        k("v_or_b32 v6, s54, v6")
        k("v_lshlrev_b32 v8, 1, v8")
        k("v_xor_b32 v6, v6, v8")
        k("v_lshl_add_u32 v7, v6, 4, v7")
        k("s_and_b32 s54, s50, 1")
        k("s_lshl_b32 s54, s54, 3")
        k("v_add_u32 v7, s54, v7")
    k("v_add_u32 v10, 0x10000, v7")
    k("v_lshlrev_b32 v11, 4, v2")
    if which == 1:
        k(f"s_lshl_b32 s54, s{s_blk}, 2")
        k("s_add_u32 s54, s54, s50")
    else:
        k("s_lshl_b32 s54, s53, 1")
        k("s_lshr_b32 s55, s50, 1")
        k("s_add_u32 s54, s54, s55")
        k("s_and_b32 s55, s50, 1")
        k("s_lshr_b32 s60, s54, 2")
        k("s_mul_i32 s60, s60, 9")
        k("s_and_b32 s61, s54, 3")
        k("s_lshl_b32 s61, s61, 1")
        k("s_add_u32 s60, s60, s61")
        k("s_add_u32 s60, s60, s55")
        k("s_sub_u32 s61, s54, 16")
        k("s_lshl_b32 s61, s61, 1")
        k("s_add_u32 s61, s61, s55")
        k("s_mul_i32 s61, s61, 9")
        k("s_add_u32 s61, s61, 8")
        k("s_cmp_lt_u32 s54, 16")
        k("s_cselect_b32 s54, s60, s61")
        k("s_mul_i32 s55, s52, 36")
        k("s_add_u32 s54, s54, s55")
    k("s_mul_i32 s55, s54, 18432")
    if which == 2:
        k("s_mul_i32 s62, s62, 9216")
        k("s_add_u32 s55, s55, s62")
    if which == 1:
        for i in range(4):
            k(f"v_mov_b32 v{12 + i}, 0x3f803f80")
    k("s_waitcnt vmcnt(0)")
    k("s_barrier")
    FR = 20
    for kk in range(NKK):
        a = 7 if kk < 16 else 10
        off = (kk % 16) * 4096
        k(f"ds_read_b64_tr_b16 {vr(FR + 4 * kk, 2)}, v{a} offset:{off}")
        k(f"ds_read_b64_tr_b16 {vr(FR + 4 * kk + 2, 2)}, v{a} offset:{off + 512}")
    for kk in range(NKK):
        k(f"s_waitcnt lgkmcnt({min(15, 2 * (NKK - 1 - kk))})")
        k(f"buffer_store_dwordx4 {vr(FR + 4 * kk, 4)}, v11, {sr(44)}, s55 offen offset:{(kk % 4) * 1024}")
        if kk % 4 == 3:
            k("s_add_u32 s55, s55, 4096")
        if which == 1:
            c = "0" if kk == 0 else vr(16, 4)
            k(f"v_mfma_f32_16x16x32_bf16 {vr(16, 4)}, {vr(FR + 4 * kk, 4)}, {vr(12, 4)}, {c}")
    if which == 1:
        k("v_and_b32 v4, 15, v2")
        k("v_cmp_eq_u32 vcc, 0, v4")
        k("v_lshrrev_b32 v4, 4, v2")
        k("v_lshlrev_b32 v4, 4, v4")
        k("s_lshl_b32 s54, s54, 6")
        k("s_and_saveexec_b64 s[60:61], vcc")
        k(f"buffer_store_dwordx4 {vr(16, 4)}, v4, {sr(56)}, s54 offen")
    k("s_endpgm")


def p1_kernel():
    k = Kernel("p1_prep_kernel")
    NW, NT, NS = 72, 288, 128
    load_kernargs(k)
    l_tile, l_stat, l_end = k.label("tile"), k.label("stat"), k.label("end")
    k(f"s_cmp_ge_u32 s2, {NW + NT + NS}")
    k(f"s_cbranch_scc1 {l_end}")
    k(f"s_cmp_ge_u32 s2, {NW + NT}")
    k(f"s_cbranch_scc1 {l_stat}")
    k(f"s_cmp_ge_u32 s2, {NW}")
    k(f"s_cbranch_scc1 {l_tile}")
    wprep_role(k, 1, 2)

    k(f"{l_tile}:")
    k(f"s_sub_u32 s3, s2, {NW}")
    k("s_and_b32 s4, s3, 31")
    k("s_lshr_b32 s5, s3, 5")
    k(f"s_mul_i32 s6, s4, {64 * 1152}")
    k("s_lshl_b32 s7, s5, 7")
    k("s_add_u32 s6, s6, s7")
    k("v_and_b32 v1, 7, v0")
    k("v_lshrrev_b32 v2, 3, v0")
    k("v_mul_u32_u24 v3, 2304, v2")
    k("v_lshl_add_u32 v3, v1, 4, v3")
    k("v_add_u32 v3, s6, v3")
    k("v_add_u32 v4, -3456, v3")
    k("v_add_u32 v5, -2304, v3")
    k("v_add_u32 v6, -1152, v3")
    k("s_lshl_b32 s8, s5, 9")
    k("v_lshl_add_u32 v7, v1, 6, s8")
    k("v_lshrrev_b32 v164, 6, v0")
    k("s_waitcnt lgkmcnt(0)")
    srd(k, 40, P_K, TB)
    srd(k, 44, P_V, TB)
    srd(k, 48, P_Q, TB)
    srd(k, 52, P_SK, D * 8)
    srd(k, 56, P_WS, TB, off=WS_UR)
    srd(k, 60, P_WS, TB, off=WS_QT)
    KD, VD, QD, TD, W, KF, VF, T0, OUT = 8, 28, 36, 44, 60, 92, 132, 148, 156
    for i in range(4):
        k(f"buffer_load_dwordx4 {vr(TD + 4 * i, 4)}, v7, {sr(52)}, 0 offen offset:{16 * i}")
    k(f"buffer_load_dwordx4 {vr(KD, 4)}, v4, {sr(40)}, 0 offen")
    k(f"buffer_load_dwordx4 {vr(KD + 4, 4)}, v5, {sr(40)}, 0 offen")
    k(f"buffer_load_dwordx4 {vr(KD + 8, 4)}, v6, {sr(40)}, 0 offen")
    k(f"buffer_load_dwordx4 {vr(KD + 12, 4)}, v3, {sr(40)}, 0 offen")
    k(f"buffer_load_dwordx4 {vr(KD + 16, 4)}, v3, {sr(40)}, 0 offen offset:1152")
    k(f"buffer_load_dwordx4 {vr(VD, 4)}, v3, {sr(44)}, 0 offen")
    k(f"buffer_load_dwordx4 {vr(VD + 4, 4)}, v3, {sr(44)}, 0 offen offset:1152")
    k(f"buffer_load_dwordx4 {vr(QD, 4)}, v3, {sr(48)}, 0 offen")
    k(f"buffer_load_dwordx4 {vr(QD + 4, 4)}, v3, {sr(48)}, 0 offen offset:1152")
    k("v_readfirstlane_b32 s9, v164")
    k("v_and_b32 v4, 1, v2")
    k("v_and_b32 v5, 4, v2")
    k("v_lshl_or_b32 v4, v4, 1, v5")
    k("v_xor_b32 v4, v4, v1")
    k("v_lshlrev_b32 v5, 8, v2")
    k("v_lshl_add_u32 v5, v4, 4, v5")
    k("v_xor_b32 v4, 6, v4")
    k("v_xor_b32 v6, 31, v2")
    k("v_lshlrev_b32 v6, 8, v6")
    k("v_lshl_add_u32 v6, v4, 4, v6")
    k("v_and_b32 v164, 63, v0")
    k("v_lshrrev_b32 v165, 4, v164")
    k("v_bfe_u32 v166, v164, 2, 2")
    k("v_and_b32 v167, 3, v164")
    k("v_lshl_add_u32 v168, v165, 3, v166")
    k("v_lshlrev_b32 v168, 7, v168")
    k("v_lshrrev_b32 v166, 1, v166")
    k("v_and_b32 v169, 1, v165")
    k("v_lshl_or_b32 v166, v169, 1, v166")
    k("v_xor_b32 v166, s9, v166")
    k("v_lshl_add_u32 v168, v166, 5, v168")
    k("v_lshl_add_u32 v168, v167, 3, v168")
    k("v_and_b32 v164, 15, v164")
    k("v_lshlrev_b32 v164, 12, v164")
    k("v_lshl_add_u32 v164, v165, 4, v164")
    k("s_lshl_b32 s10, s5, 6")
    k("s_lshl_b32 s11, s9, 4")
    k("s_add_u32 s10, s10, s11")
    k("s_lshl_b32 s10, s10, 12")
    k("s_lshl_b32 s11, s4, 7")
    k("s_add_u32 s12, s10, s11")
    k(f"s_sub_u32 s13, {2 * 1984}, s11")
    k("s_add_u32 s13, s13, s10")
    k("s_waitcnt vmcnt(9)")
    for c in range(8):
        unpack(k, W + 0 * 8 + c, W + 1 * 8 + c, TD + 2 * c)
        unpack(k, W + 2 * 8 + c, W + 3 * 8 + c, TD + 2 * c + 1)
    k("s_waitcnt vmcnt(4)")
    for r in range(5):
        for i in range(4):
            unpack(k, KF + 8 * r + 2 * i, KF + 8 * r + 2 * i + 1, KD + 4 * r + i)
    k("s_waitcnt vmcnt(0)")
    k(f"ds_write_b128 v5, {vr(QD, 4)} offset:8192")
    k(f"ds_write_b128 v5, {vr(QD + 4, 4)} offset:{8192 + 128}")
    for ro in range(2):
        for i in range(4):
            unpack(k, VF + 8 * ro + 2 * i, VF + 8 * ro + 2 * i + 1, VD + 4 * ro + i)
    A, B, T = T0, T0 + 2, T0 + 4
    for ro in range(2):
        for i in range(4):
            k(f"v_pk_mul_f32 {vr(A, 2)}, {vr(KF + 8 * ro + 2 * i, 2)}, {vr(W + 24 + 2 * i, 2)}")
            round_pair(k, A, T)
            for t in range(1, 4):
                k(f"v_pk_mul_f32 {vr(B, 2)}, {vr(KF + 8 * (ro + t) + 2 * i, 2)}, {vr(W + 8 * (3 - t) + 2 * i, 2)}")
                round_pair(k, B, T)
                k(f"v_pk_add_f32 {vr(A, 2)}, {vr(A, 2)}, {vr(B, 2)}")
                round_pair(k, A, T)
            k(f"v_pk_mul_f32 {vr(A, 2)}, {vr(A, 2)}, {vr(VF + 8 * ro + 2 * i, 2)}")
            k(f"v_cvt_pk_bf16_f32 v{OUT + 4 * ro + i}, v{A}, v{A + 1}")
        k(f"ds_write_b128 v6, {vr(OUT + 4 * ro, 4)} offset:{128 * (1 - ro)}")
    k("s_waitcnt lgkmcnt(0)")
    k("s_barrier")
    R0 = 8
    for img in range(2):
        for h in range(2):
            for e in range(2):
                k(f"ds_read_b64_tr_b16 {vr(R0 + 8 * img + 4 * h + 2 * e, 2)}, v168 offset:{img * 8192 + h * 4096 + e * 512}")
    for img in range(2):
        for h in range(2):
            k(f"s_waitcnt lgkmcnt({6 - 4 * img - 2 * h})")
            k(f"buffer_store_dwordx4 {vr(R0 + 8 * img + 4 * h, 4)}, v164, {sr(56 + 4 * img)}, s{13 - img} offen offset:{64 * h}")
    k("s_endpgm")

    k(f"{l_stat}:")
    k(f"s_sub_u32 s3, s2, {NW + NT}")
    k("v_lshrrev_b32 v1, 4, v0")
    k("v_and_b32 v2, 15, v0")
    k("s_lshl_b32 s4, s3, 4")
    k("v_add_u32 v1, s4, v1")
    k("v_mul_u32_u24 v3, 1152, v1")
    k("v_lshl_add_u32 v3, v2, 3, v3")
    k("s_waitcnt lgkmcnt(0)")
    srd(k, 40, P_Q, TB)
    srd(k, 44, P_WS, 16384, off=WS_M1)
    X, XF = 8, 28
    for j in range(9):
        k(f"buffer_load_dwordx2 {vr(X + 2 * j, 2)}, v3, {sr(40)}, 0 offen offset:{128 * j}")
    ln_stats(k, X, XF, 18, 4, 6, 576, reduce16=True)
    k("v_cmp_eq_u32 vcc, 0, v2")
    k("v_lshlrev_b32 v1, 2, v1")
    k("s_and_saveexec_b64 s[60:61], vcc")
    k(f"buffer_store_dword v4, v1, {sr(44)}, 0 offen")
    k(f"v_add_u32 v1, 0x2000, v1")
    k(f"buffer_store_dword v5, v1, {sr(44)}, 0 offen")
    k(f"{l_end}:")
    k("s_endpgm")
    return k, NW + NT + NS


def dpp_reduce16(k, v, t):
    for n in (8, 4, 2, 1):
        k(f"v_add_f32_dpp v{v}, v{v}, v{v} row_ror:{n} row_mask:0xf bank_mask:0xf")


def finish_stats(k, vmean, vvar, t):
    k(f"v_cvt_pk_bf16_f32 v{t}, v{vmean}, v{vvar}")
    unpack(k, vmean, vvar, t)
    k(f"v_add_f32 v{vvar}, 0x3727c5ac, v{vvar}")
    k(f"v_cvt_pk_bf16_f32 v{t}, v{vvar}, v{vvar}")
    k(f"v_and_b32 v{vvar}, {MASKHI}, v{t}")
    k(f"v_sqrt_f32 v{vvar}, v{vvar}")
    k(f"v_cvt_pk_bf16_f32 v{t}, v{vvar}, v{vvar}")
    k(f"v_and_b32 v{vvar}, {MASKHI}, v{t}")
    k(f"v_rcp_f32 v{vvar}, v{vvar}")


def ln_stats(k, X, XF, ndw, R, T, n, reduce16):
    for j in range(ndw):
        if j % 2 == 0:
            k(f"s_waitcnt vmcnt({(ndw - j) // 2 - 1})")
        unpack(k, XF + 2 * j, XF + 2 * j + 1, X + j)
        if j == 1:
            k(f"v_pk_add_f32 {vr(R, 2)}, {vr(XF, 2)}, {vr(XF + 2, 2)}")
        elif j > 1:
            k(f"v_pk_add_f32 {vr(R, 2)}, {vr(R, 2)}, {vr(XF + 2 * j, 2)}")
    k(f"v_add_f32 v{R}, v{R}, v{R + 1}")
    dpp_reduce16(k, R, T)
    k(f"v_mul_f32 v{R}, {hex(f32bits(1.0 / n))}, v{R}")
    k(f"v_mov_b32 v{R + 1}, v{R}")
    for j in range(ndw):
        k(f"v_pk_add_f32 {vr(XF + 2 * j, 2)}, {vr(XF + 2 * j, 2)}, {vr(R, 2)} neg_lo:[0,1] neg_hi:[0,1]")
        if j == 0:
            k(f"v_pk_mul_f32 {vr(T, 2)}, {vr(XF, 2)}, {vr(XF, 2)}")
        else:
            k(f"v_pk_fma_f32 {vr(T, 2)}, {vr(XF + 2 * j, 2)}, {vr(XF + 2 * j, 2)}, {vr(T, 2)}")
    k(f"v_add_f32 v{R + 1}, v{T}, v{T + 1}")
    dpp_reduce16(k, R + 1, T)
    k(f"v_mul_f32 v{R + 1}, {hex(f32bits(1.0 / n))}, v{R + 1}")
    finish_stats(k, R, R + 1, T)


def f32bits(x):
    import struct
    return struct.unpack("<I", struct.pack("<f", x))[0]


class Cnt:
    def __init__(self, k, name, maxv):
        self.k, self.name, self.maxv = k, name, maxv
        self.issued = 0
        self.done = 0

    def issue(self):
        self.issued += 1
        return self.issued - 1

    def need(self, op):
        if op < self.done:
            return
        n = self.issued - 1 - op
        n = min(n, self.maxv)
        self.k(f"s_waitcnt {self.name}({n})")
        self.done = self.issued - n

    def all(self):
        if self.done < self.issued:
            self.k(f"s_waitcnt {self.name}(0)")
            self.done = self.issued


P2_U = 33280
P2_LDS = 37888


def p2_kernel():
    k = Kernel("p2_conv_kernel")
    NW, NC = 144, 576
    load_kernargs(k)
    l_conv, l_end = k.label("conv"), k.label("end")
    k(f"s_cmp_ge_u32 s2, {NW + NC}")
    k(f"s_cbranch_scc1 {l_end}")
    k(f"s_cmp_ge_u32 s2, {NW}")
    k(f"s_cbranch_scc1 {l_conv}")
    wprep_role(k, 2, 2)

    k(f"{l_conv}:")
    k(f"s_sub_u32 s3, s2, {NW}")
    k("s_lshl_b32 s4, s3, 12")
    k("v_lshrrev_b32 v1, 6, v0")
    k("v_and_b32 v2, 63, v0")
    k("v_readfirstlane_b32 s5, v1")
    k("v_lshlrev_b32 v3, 4, v0")
    k("v_add_u32 v4, -16, v3")
    k("s_lshr_b32 s6, s3, 1")
    k("s_lshl_b32 s6, s6, 2")
    k("s_waitcnt lgkmcnt(0)")
    k(f"s_load_dword s7, s[{P_SD}:{P_SD + 1}], s6")
    srd(k, 40, P_SSM, 4096, soff=4)
    srd(k, 44, P_WS, TB, off=WS_UR)
    srd(k, 48, P_WS, TB, off=WS_QT)
    srd(k, 52, P_WS, 16384, off=WS_M1)
    srd(k, 56, P_WS, TB, off=WS_HT)
    ACC = 16
    BE, BO = 48, 80
    AR = 112
    QD = 128
    M1R, RSR = 132, 140
    WD = BE
    WB = BE + 8
    AA = BE + 16
    AB = BE + 24
    vm = Cnt(k, "vmcnt", 63)
    k(f"buffer_load_dwordx4 {vr(WD, 4)}, v4, {sr(40)}, 0 offen")
    o_w0 = vm.issue()
    k(f"buffer_load_dwordx4 {vr(WD + 4, 4)}, v3, {sr(40)}, 0 offen")
    o_w1 = vm.issue()
    k("s_lshl_b32 s8, s5, 10")
    k(f"s_add_u32 m0, s8, {P2_U}")
    k(f"buffer_load_dwordx4 v3, {sr(44)}, s4 offen lds")
    o_u = vm.issue()
    k("v_and_b32 v5, 15, v2")
    k("v_lshrrev_b32 v6, 4, v2")
    k("v_lshlrev_b32 v7, 5, v5")
    k("v_lshl_add_u32 v7, v6, 3, v7")
    k("s_add_u32 s9, s4, s8")
    k(f"buffer_load_dwordx2 {vr(QD, 2)}, v7, {sr(48)}, s9 offen")
    o_q0 = vm.issue()
    k(f"buffer_load_dwordx2 {vr(QD + 2, 2)}, v7, {sr(48)}, s9 offen offset:512")
    o_q1 = vm.issue()
    k("v_lshlrev_b32 v8, 1, v7")
    k("s_lshl_b32 s10, s5, 11")
    k("s_add_u32 s11, s10, 0x2000")
    k(f"buffer_load_dwordx4 {vr(M1R, 4)}, v8, {sr(52)}, s10 offen")
    vm.issue()
    k(f"buffer_load_dwordx4 {vr(M1R + 4, 4)}, v8, {sr(52)}, s10 offen offset:1024")
    vm.issue()
    k(f"buffer_load_dwordx4 {vr(RSR, 4)}, v8, {sr(52)}, s11 offen")
    vm.issue()
    k(f"buffer_load_dwordx4 {vr(RSR + 4, 4)}, v8, {sr(52)}, s11 offen offset:1024")
    o_st = vm.issue()

    def cbase(rp):
        return (1041 if rp & 1 else 0) + 260 * (rp >> 1)

    k("v_and_b32 v9, 1, v2")
    k("v_mul_u32_u24 v9, 1041, v9")
    k("v_bfe_u32 v10, v2, 1, 2")
    k("v_mul_u32_u24 v10, 260, v10")
    k("v_add_u32 v9, v9, v10")
    k("v_lshlrev_b32 v10, 4, v9")
    k(f"v_lshlrev_b32 v11, 4, v2")
    k(f"v_add_u32 v11, {P2_U + 4096 - 128}, v11")
    k("v_cmp_gt_u32 vcc, 8, v2")
    k("v_cndmask_b32 v10, v11, v10, vcc")
    for i in range(4):
        k(f"v_mov_b32 v{12 + i}, 0")
    k("v_cmp_gt_u32 vcc, 38, v2")
    k("s_and_saveexec_b64 s[12:13], vcc")
    k(f"ds_write_b128 v10, {vr(12, 4)}")
    k("s_mov_b64 exec, s[12:13]")
    k("v_lshrrev_b32 v10, 3, v5")
    k("v_add3_u32 v9, v9, v6, v10")
    k("s_lshl_b32 s12, s5, 2")
    k("v_add_u32 v9, s12, v9")
    k("v_lshlrev_b32 v9, 4, v9")
    k("s_lshl_b32 s12, s5, 6")
    k(f"s_add_u32 s12, s12, {P2_U + 4064 - 3584}")
    k("v_lshlrev_b32 v10, 4, v6")
    k("v_add_u32 v10, s12, v10")
    k("v_lshlrev_b32 v11, 5, v5")
    k("v_sub_u32 v10, v10, v11")
    k(f"s_sub_u32 s12, {P2_U + 4088 - 512}, s8")
    k("v_sub_u32 v11, s12, v7")
    k("v_lshlrev_b32 v12, 4, v2")
    k("v_add_u32 v13, s8, v12")
    k("s_lshl_b32 s12, s5, 13")
    k("v_add_u32 v12, s12, v12")
    vm.need(o_w1)
    for i in range(6):
        k(f"v_mov_b32 v{WB + i}, v{WD + 1 + i}")
    for i in range(7):
        k(f"v_alignbit_b32 v{AA + i}, v{WD + i + 1}, v{WD + i}, 16")
    for i in range(6):
        k(f"v_alignbit_b32 v{AB + i}, v{WD + i + 2}, v{WD + i + 1}, 16")
    srcs = {1: AA, 3: AB, 5: AA + 2, 7: AB + 2, 2: WB, 4: WD + 2, 6: WB + 2, 8: WD + 4}
    for rp in range(8):
        k(f"ds_write_b128 v3, {vr(srcs[rp + 1], 4)} offset:{(cbase(rp) + 1) * 16}")
    vm.need(o_u)
    k("s_waitcnt lgkmcnt(0)")
    k("s_barrier")
    k("s_and_b32 s12, s3, 1")
    k("s_lshl_b32 s14, s7, 16")
    k(f"s_and_b32 s15, s7, {MASKHI}")
    k("s_cmp_eq_u32 s12, 1")
    k("s_cselect_b32 s14, s15, s14")
    k("s_mov_b32 s15, s14")

    lg = Cnt(k, "lgkmcnt", 15)
    order = list(range(0, 16, 2)) + list(range(1, 16, 2))
    a_op, b_op = {}, {}

    def rdA(ia):
        a = order[ia]
        k(f"ds_read_b128 {vr(AR + 4 * (ia % 4), 4)}, v9 offset:{256 * a}")
        a_op[ia] = lg.issue()

    def breg(beta):
        return (BE + 4 * (beta // 2)) if beta % 2 == 0 else (BO + 4 * ((beta + 1) // 2))

    def rdB(beta):
        k(f"ds_read_b128 {vr(breg(beta), 4)}, v10 offset:{256 * (14 - beta)}")
        b_op[beta] = lg.issue()

    rdA(0)
    for beta in range(0, 16, 2):
        rdB(beta)
    rdA(1)
    rdA(2)
    rdA(3)
    odd_left = list(range(-1, 15, 2))
    started = set()
    for ia in range(16):
        a = order[ia]
        betas = [b for b in range(-1 if a % 2 else 0, 15 - a, 2)]
        lg.need(a_op[ia])
        for bi, beta in enumerate(betas):
            t = (a + beta) // 2
            lg.need(b_op[beta])
            c = vr(ACC + 4 * t, 4) if t in started else "0"
            started.add(t)
            k(f"v_mfma_f32_16x16x32_bf16 {vr(ACC + 4 * t, 4)}, {vr(AR + 4 * (ia % 4), 4)}, {vr(breg(beta), 4)}, {c}")
            if ia in (1, 2) and odd_left and bi < 4:
                rdB(odd_left.pop(0))
        if ia + 4 < 16:
            rdA(ia + 4)
    k("s_barrier")
    for t in range(8):
        k(f"ds_write_b128 v13, {vr(ACC + 4 * t, 4)} offset:{t * 4096}")
    k("s_waitcnt lgkmcnt(0)")
    k("s_barrier")
    RD = BE
    KV = BO
    lg = Cnt(k, "lgkmcnt", 15)
    ops = {}
    for tt in range(2):
        k(f"ds_read_b64 {vr(KV + 2 * tt, 2)}, v11 offset:{512 * (1 - tt)}")
        ops[("kv", tt)] = lg.issue()
        for s_ in range(4):
            k(f"ds_read_b128 {vr(RD + 16 * tt + 4 * s_, 4)}, v12 offset:{tt * 4096 + s_ * 1024}")
            ops[(tt, s_)] = lg.issue()
    vm.need(o_st)
    Y, KF, QF, T, H = ACC, ACC + 4, ACC + 8, ACC + 12, ACC + 14
    for tt in range(2):
        lg.need(ops[("kv", tt)])
        k(f"v_and_b32 v{KF}, {MASKHI}, v{KV + 2 * tt + 1}")
        k(f"v_lshlrev_b32 v{KF + 1}, 16, v{KV + 2 * tt + 1}")
        k(f"v_and_b32 v{KF + 2}, {MASKHI}, v{KV + 2 * tt}")
        k(f"v_lshlrev_b32 v{KF + 3}, 16, v{KV + 2 * tt}")
        X = ACC + 16
        for p in range(2):
            k(f"v_pk_mul_f32 {vr(KF + 2 * p, 2)}, {vr(KF + 2 * p, 2)}, s[14:15]")
            round_pair(k, KF + 2 * p, T)
            unpack(k, QF + 2 * p, QF + 2 * p + 1, QD + 2 * tt + p)
            k(f"v_pk_add_f32 {vr(X + 2 * p, 2)}, {vr(QF + 2 * p, 2)}, {vr(M1R + 4 * tt + 2 * p, 2)} neg_lo:[0,1] neg_hi:[0,1]")
            round_pair(k, X + 2 * p, T)
            k(f"v_pk_mul_f32 {vr(X + 2 * p, 2)}, {vr(X + 2 * p, 2)}, {vr(RSR + 4 * tt + 2 * p, 2)}")
            round_pair(k, X + 2 * p, T)
        lg.need(ops[(tt, 1)])
        r0 = RD + 16 * tt
        for p in range(2):
            k(f"v_pk_add_f32 {vr(Y + 2 * p, 2)}, {vr(r0 + 2 * p, 2)}, {vr(r0 + 4 + 2 * p, 2)}")
        lg.need(ops[(tt, 3)])
        for p in range(2):
            k(f"v_pk_add_f32 {vr(Y + 2 * p, 2)}, {vr(Y + 2 * p, 2)}, {vr(r0 + 8 + 2 * p, 2)}")
            k(f"v_pk_add_f32 {vr(Y + 2 * p, 2)}, {vr(Y + 2 * p, 2)}, {vr(r0 + 12 + 2 * p, 2)}")
            round_pair(k, Y + 2 * p, T)
            k(f"v_pk_add_f32 {vr(Y + 2 * p, 2)}, {vr(Y + 2 * p, 2)}, {vr(KF + 2 * p, 2)}")
            round_pair(k, Y + 2 * p, T)
            k(f"v_pk_mul_f32 {vr(Y + 2 * p, 2)}, {vr(Y + 2 * p, 2)}, {vr(X + 2 * p, 2)}")
            round_pair(k, Y + 2 * p, T)
            k(f"v_pk_add_f32 {vr(Y + 2 * p, 2)}, {vr(Y + 2 * p, 2)}, {vr(QF + 2 * p, 2)}")
            k(f"v_cvt_pk_bf16_f32 v{H + 8 * tt + p}, v{Y + 2 * p}, v{Y + 2 * p + 1}")
        k(f"buffer_store_dwordx2 {vr(H + 8 * tt, 2)}, v7, {sr(56)}, s9 offen offset:{512 * tt}")
    k(f"{l_end}:")
    k("s_endpgm")
    return k, NW + NC


P4_HID = 73728
P4_HP = 1184
P4_ST = P4_HID + 64 * P4_HP
P4_C1 = P4_ST + 512
P4_LDS = P4_C1 + 4096


def p4_kernel():
    k = Kernel("p4_mlp_kernel")
    load_kernargs(k)
    l_end = k.label("end")
    k("s_cmp_ge_u32 s2, 256")
    k(f"s_cbranch_scc1 {l_end}")
    B0 = 184
    RING = 112
    ACC = 96
    D1, D2 = 88, 92
    ONES = 84
    C1R = 80
    MR, RSR = 72, 76
    TMP = 56
    VT, VH, VHC = 40, 44, 48
    VP = 52

    def breg(kk, ct):
        return vr(B0 + 4 * kk, 4) if ct == 0 else ar((ct - 1) * 72 + 4 * kk, 4)

    def bhalf(kk, ct, h):
        return vr(B0 + 4 * kk + 2 * h, 2) if ct == 0 else ar((ct - 1) * 72 + 4 * kk + 2 * h, 2)

    k("s_and_b32 s3, s2, 7")
    k("s_lshr_b32 s4, s2, 3")
    k("v_lshrrev_b32 v1, 6, v0")
    k("v_and_b32 v2, 63, v0")
    k("v_readfirstlane_b32 s5, v1")
    k("v_lshrrev_b32 v3, 3, v2")
    k("v_lshlrev_b32 v4, 12, v3")
    k("v_and_b32 v3, 2, v3")
    k("s_and_b32 s6, s5, 1")
    k("s_lshl_b32 s6, s6, 2")
    k("v_or_b32 v3, s6, v3")
    k("v_and_b32 v5, 7, v2")
    k("v_xor_b32 v3, v3, v5")
    k("v_lshl_add_u32 v3, v3, 4, v4")
    k("v_lshlrev_b32 v4, 4, v2")
    k("s_lshl_b32 s6, s5, 15")
    k("s_lshl_b32 s7, s4, 7")
    k("s_add_u32 s6, s6, s7")
    k("s_lshl_b32 s7, s5, 10")
    k("s_mul_i32 s8, s4, 7282")
    k("s_lshr_b32 s8, s8, 16")
    k("s_mul_i32 s8, s8, 9")
    k("s_sub_u32 s8, s4, s8")
    k("s_mul_i32 s9, s3, 36")
    k("s_mul_i32 s10, s5, 9")
    k("s_add_u32 s9, s9, s10")
    k("s_lshl_b32 s11, s9, 6")
    k("s_mul_i32 s9, s9, 18432")
    k("s_waitcnt lgkmcnt(0)")
    srd(k, 40, P_WS, TB, off=WS_HT)
    srd(k, 44, P_WS, 2 * WF_BYTES, off=WS_W1F)
    srd(k, 48, P_WS, F * 4, off=WS_C1)
    srd(k, 52, P_WS, 8 * TB, off=WS_PART)
    srd(k, 56, P_WS, TB, off=WS_HF)
    for i in range(18):
        k(f"s_add_u32 m0, s7, {i * 4096}")
        k(f"buffer_load_dwordx4 v3, {sr(40)}, s6 offen lds")
        if i != 17:
            k(f"s_add_u32 s6, s6, {32 * 4096}")
    k(f"s_add_u32 m0, s7, {P4_C1}")
    k(f"buffer_load_dwordx4 v4, {sr(48)}, s11 offen lds")
    k("s_mul_i32 s10, s8, 18432")
    k("s_add_u32 s10, s10, s9")
    for kk in range(18):
        k(f"buffer_load_dwordx4 {vr(RING + 4 * kk, 4)}, v4, {sr(44)}, s10 offen offset:{(kk % 4) * 1024}")
        if kk % 4 == 3:
            k("s_add_u32 s10, s10, 4096")
    k("v_lshrrev_b32 v5, 4, v2")
    k("v_and_b32 v6, 15, v2")
    k("v_bfe_u32 v7, v2, 2, 2")
    k("v_and_b32 v8, 3, v2")
    k("v_lshl_add_u32 v9, v5, 3, v7")
    k("v_lshlrev_b32 v9, 7, v9")
    k("v_lshl_add_u32 v9, v8, 3, v9")
    k("v_lshrrev_b32 v7, 1, v7")
    k("v_and_b32 v8, 1, v5")
    k("v_lshl_or_b32 v7, v8, 1, v7")
    k(f"v_mul_u32_u24 v10, {P4_HP}, v6")
    k("v_lshl_add_u32 v10, v5, 3, v10")
    k(f"s_mul_i32 s11, s5, 288")
    k(f"s_add_u32 s11, s11, {P4_HID}")
    k("v_lshlrev_b32 v11, 3, v6")
    for ct in range(4):
        k(f"s_add_u32 s12, s5, {ct}")
        k("s_and_b32 s12, s12, 3")
        k("v_xor_b32 v8, s12, v7")
        k(f"v_lshl_add_u32 v{VT + ct}, v8, 5, v9")
        k(f"s_mul_i32 s13, s12, {16 * P4_HP}")
        k("s_add_u32 s13, s13, s11")
        k(f"v_add_u32 v{VH + ct}, s13, v10")
        k("s_lshl_b32 s13, s12, 10")
        k(f"v_add_u32 v{VP + ct}, s13, v4")
        k("s_lshl_b32 s13, s12, 7")
        k(f"s_add_u32 s13, s13, {P4_ST}")
        k(f"v_add_u32 v{12 + ct}, s13, v11")
    k(f"v_lshlrev_b32 v16, 4, v5")
    k(f"s_add_u32 s13, s7, {P4_C1}")
    k(f"v_add_u32 v16, s13, v16")
    for i in range(4):
        k(f"v_mov_b32 v{ONES + i}, 0x3f803f80")
    k("s_waitcnt vmcnt(18)")
    k("s_barrier")
    lg = Cnt(k, "lgkmcnt", 15)
    last0 = {}

    def stats_mfma(kk):
        lg.need(last0[kk])
        c1 = "0" if kk == 0 else vr(D1, 4)
        c2 = "0" if kk == 0 else vr(D2, 4)
        k(f"v_mfma_f32_16x16x32_bf16 {vr(D1, 4)}, {vr(ONES, 4)}, {breg(kk, 0)}, {c1}")
        k(f"v_mfma_f32_16x16x32_bf16 {vr(D2, 4)}, {breg(kk, 0)}, {breg(kk, 0)}, {c2}")

    for kk in range(18):
        if kk == 16:
            for ct in range(4):
                k(f"v_add_u32 v{VT + ct}, 0x10000, v{VT + ct}")
        for ct in range(4):
            for h in range(2):
                k(f"ds_read_b64_tr_b16 {bhalf(kk, ct, h)}, v{VT + ct} offset:{(kk % 16) * 4096 + 512 * h}")
                o = lg.issue()
            if ct == 0:
                last0[kk] = o
        if kk >= 1:
            stats_mfma(kk - 1)
    stats_mfma(17)
    k(f"s_mul_i32 s12, s4, 73728")
    for kk in range(18):
        l = k.label("hf")
        k(f"s_cmp_lg_u32 s3, {kk & 7}")
        k(f"s_cbranch_scc1 {l}")
        k(f"s_add_u32 s13, s12, {kk * 4096}")
        k(f"buffer_store_dwordx4 {breg(kk, 0)}, v{VP}, {sr(56)}, s13 offen")
        k(f"{l}:")
    k("v_and_b32 v8, 3, v6")
    k("v_cmp_eq_u32 vcc, 1, v8")
    k(f"v_cndmask_b32 v{TMP + 1}, v{D2}, v{D2 + 1}, vcc")
    k("v_cmp_eq_u32 vcc, 2, v8")
    k(f"v_cndmask_b32 v{TMP + 1}, v{TMP + 1}, v{D2 + 2}, vcc")
    k("v_cmp_eq_u32 vcc, 3, v8")
    k(f"v_cndmask_b32 v{TMP + 1}, v{TMP + 1}, v{D2 + 3}, vcc")
    inv = hex(f32bits(1.0 / 576))
    k(f"v_mul_f32 v{TMP}, {inv}, v{D1}")
    k(f"v_mul_f32 v{TMP + 1}, {inv}, v{TMP + 1}")
    k(f"v_fma_f32 v{TMP + 1}, -v{TMP}, v{TMP}, v{TMP + 1}")
    k(f"v_max_f32 v{TMP + 1}, 0, v{TMP + 1}")
    finish_stats(k, TMP, TMP + 1, TMP + 2)
    k("v_lshrrev_b32 v8, 2, v6")
    k("v_cmp_eq_u32 vcc, v8, v5")
    k("s_and_saveexec_b64 s[12:13], vcc")
    k(f"ds_write_b64 v12, {vr(TMP, 2)}")
    k("s_mov_b64 exec, s[12:13]")
    k("s_waitcnt lgkmcnt(0)")
    k("s_mov_b32 s14, 0")

    def next_tile():
        k("s_add_u32 s15, s8, 1")
        k("s_cmp_eq_u32 s15, 9")
        k("s_cselect_b32 s15, 0, s15")
        k("s_mul_i32 s10, s15, 18432")
        k("s_add_u32 s10, s10, s9")

    def kloop(N):
        for kk in range(18):
            k(f"s_waitcnt vmcnt({N})")
            for ct in range(4):
                c = "0" if kk == 0 else vr(ACC + 4 * ct, 4)
                k(f"v_mfma_f32_16x16x32_bf16 {vr(ACC + 4 * ct, 4)}, {vr(RING + 4 * kk, 4)}, {breg(kk, ct)}, {c}")
            k(f"buffer_load_dwordx4 {vr(RING + 4 * kk, 4)}, v4, {sr(44)}, s10 offen offset:{(kk % 4) * 1024}")
            if kk % 4 == 3 and kk != 17:
                k("s_add_u32 s10, s10, 4096")

    l1, l1b = k.label("ph1"), k.label("ph1b")
    k(f"{l1}:")
    k("s_cmp_eq_u32 s14, 8")
    k(f"s_cselect_b32 s12, {WF_BYTES}, 0")
    k("s_add_u32 s9, s9, s12")
    next_tile()
    k("s_lshl_b32 s12, s8, 6")
    k(f"v_add_u32 v17, s12, v16")
    k(f"ds_read_b128 {vr(C1R, 4)}, v17")
    k("s_lshl_b32 s12, s8, 5")
    for ct in range(4):
        k(f"v_add_u32 v{VHC + ct}, s12, v{VH + ct}")
    kloop(17)
    k("s_cmp_lg_u32 s14, 0")
    k(f"s_cbranch_scc1 {l1b}")
    k("s_barrier")
    for ct in range(4):
        k(f"ds_read_b64 {vr(MR + 2 * ct, 2)}, v{12 + ct}")
    k(f"{l1b}:")
    k("s_waitcnt lgkmcnt(0)")
    for ct in range(4):
        a = ACC + 4 * ct
        t = TMP + 4 * (ct % 2)
        for r in range(4):
            k(f"v_fma_f32 v{a + r}, -v{MR + 2 * ct}, v{C1R + r}, v{a + r}")
        k(f"v_cvt_pk_bf16_f32 v{t}, v{a}, v{a + 1}")
        k(f"v_cvt_pk_bf16_f32 v{t + 1}, v{a + 2}, v{a + 3}")
        k(f"v_pk_max_i16 v{t}, v{t}, 0")
        k(f"v_pk_max_i16 v{t + 1}, v{t + 1}, 0")
        k(f"ds_write_b64 v{VHC + ct}, {vr(t, 2)}")
    k("s_mov_b32 s8, s15")
    k("s_add_u32 s14, s14, 1")
    k("s_cmp_lt_u32 s14, 9")
    k(f"s_cbranch_scc1 {l1}")
    k("s_waitcnt lgkmcnt(0)")
    k("s_barrier")
    k("s_mul_i32 s12, s5, 288")
    k("v_lshlrev_b32 v8, 3, v5")
    k("v_subrev_u32 v8, s12, v8")
    for ct in range(4):
        k(f"v_add_u32 v{VH + ct}, v8, v{VH + ct}")
    for kk in range(18):
        for ct in range(4):
            k(f"ds_read_b128 {breg(kk, ct)}, v{VH + ct} offset:{64 * kk}")
    k(f"s_mul_i32 s16, s3, {TB}")
    k(f"s_mul_i32 s17, s4, 73728")
    k("s_add_u32 s16, s16, s17")
    k("s_lshr_b32 s17, s5, 1")
    k("s_add_u32 s17, s17, 16")
    k("s_lshl_b32 s17, s17, 12")
    k("s_and_b32 s18, s5, 1")
    k("s_lshl_b32 s18, s18, 3")
    k("s_add_u32 s17, s17, s18")
    k("s_lshl_b32 s18, s5, 14")
    k("s_waitcnt lgkmcnt(0)")
    l2 = k.label("ph2")
    k(f"{l2}:")
    next_tile()
    k("s_cmp_eq_u32 s14, 17")
    k("s_cselect_b32 s10, 0x7f000000, s10")
    k("s_lshr_b32 s12, s8, 1")
    k("s_lshl_b32 s12, s12, 12")
    k("s_and_b32 s13, s8, 1")
    k("s_lshl_b32 s13, s13, 3")
    k("s_add_u32 s12, s12, s13")
    k("s_add_u32 s12, s12, s18")
    k("s_cmp_eq_u32 s8, 8")
    k("s_cselect_b32 s12, s17, s12")
    k("s_add_u32 s12, s12, s16")
    kloop(17)
    for ct in range(4):
        a = ACC + 4 * ct
        t = TMP + 2 * ct
        for r in range(4):
            k(f"v_mul_f32 v{a + r}, v{MR + 2 * ct + 1}, v{a + r}")
        k(f"v_cvt_pk_bf16_f32 v{t}, v{a}, v{a + 1}")
        k(f"v_cvt_pk_bf16_f32 v{t + 1}, v{a + 2}, v{a + 3}")
        k(f"buffer_store_dwordx2 {vr(t, 2)}, v{VP + ct}, {sr(52)}, s12 offen")
    k("s_mov_b32 s8, s15")
    k("s_add_u32 s14, s14, 1")
    k("s_cmp_lt_u32 s14, 18")
    k(f"s_cbranch_scc1 {l2}")
    k(f"{l_end}:")
    k("s_endpgm")
    return k, 256


def p5_kernel():
    k = Kernel("p5_reduce_kernel")
    load_kernargs(k)
    l_end = k.label("end")
    k("s_cmp_ge_u32 s2, 576")
    k(f"s_cbranch_scc1 {l_end}")
    k("s_mul_i32 s3, s2, 3641")
    k("s_lshr_b32 s3, s3, 16")
    k("s_mul_i32 s4, s3, 18")
    k("s_sub_u32 s4, s2, s4")
    k("v_lshlrev_b32 v1, 4, v0")
    k("s_lshl_b32 s5, s2, 12")
    k("s_waitcnt lgkmcnt(0)")
    srd(k, 40, P_WS, 8 * TB, off=WS_PART)
    srd(k, 44, P_WS, TB, off=WS_HF)
    srd(k, 48, P_OUT, TB)
    k("s_mov_b32 s6, s5")
    for j in range(8):
        k(f"buffer_load_dwordx4 {vr(8 + 4 * j, 4)}, v1, {sr(40)}, s6 offen")
        if j != 7:
            k(f"s_add_u32 s6, s6, {TB}")
    k(f"buffer_load_dwordx4 {vr(40, 4)}, v1, {sr(44)}, s5 offen")
    k("v_lshrrev_b32 v2, 6, v0")
    k("v_and_b32 v3, 15, v0")
    k("v_lshl_add_u32 v2, v2, 4, v3")
    k("v_mul_u32_u24 v2, 1152, v2")
    k("v_bfe_u32 v3, v0, 4, 2")
    k("v_lshl_add_u32 v2, v3, 4, v2")
    k(f"s_mul_i32 s6, s3, {64 * 1152}")
    k("s_lshl_b32 s7, s4, 6")
    k("s_add_u32 s6, s6, s7")
    A, T = 44, 52
    for j in range(8):
        k(f"s_waitcnt vmcnt({8 - j})")
        for i in range(4):
            if j == 0:
                unpack(k, A + 2 * i, A + 2 * i + 1, 8 + i)
            else:
                unpack(k, T, T + 1, 8 + 4 * j + i)
                k(f"v_pk_add_f32 {vr(A + 2 * i, 2)}, {vr(A + 2 * i, 2)}, {vr(T, 2)}")
    k("s_waitcnt vmcnt(0)")
    for i in range(4):
        round_pair(k, A + 2 * i, T + 2)
        unpack(k, T, T + 1, 40 + i)
        k(f"v_pk_add_f32 {vr(A + 2 * i, 2)}, {vr(A + 2 * i, 2)}, {vr(T, 2)}")
        k(f"v_cvt_pk_bf16_f32 v{4 + i}, v{A + 2 * i}, v{A + 2 * i + 1}")
    k(f"buffer_store_dwordx4 {vr(4, 4)}, v2, {sr(48)}, s6 offen")
    k(f"{l_end}:")
    k("s_endpgm")
    return k, 576


def build(kernels, path):
    head = open(os.path.join(os.path.dirname(os.path.abspath(__file__)), "..", "cdna_kernels", NAME + ".s.ref")).read()
    head = [l for l in head.split("\n") if l.startswith(";") and "@launch" not in l]
    out = list(head)
    texts, descs = [], []
    for k, grid, block, lds in kernels:
        n = k.fix_hazards()
        t, d = k.emit()
        texts.append(t)
        descs.append(d)
        out.append(f"; @launch kernel={k.name} grid=({grid},1,1) block=({block},1,1) lds={lds}")
        print(f"{k.name}: {len(k.lines)} lines, {n} nops added, regs (v,a,s,nfv)={k.stats}")
    out.append('.amdgcn_target "amdgcn-amd-amdhsa--gfx950"')
    out.append(".text")
    out += texts
    out.append('.section .rodata,"a"')
    for d in descs:
        out.append(".p2align 6")
        out.append(d)
    open(path, "w").write("\n".join(out) + "\n")


if __name__ == "__main__":
    ks = []
    k1, g1 = p1_kernel()
    ks.append((k1, g1, 256, 73728))
    k2, g2 = p2_kernel()
    ks.append((k2, g2, 256, P2_LDS))
    k4, g4 = p4_kernel()
    ks.append((k4, g4, 256, P4_LDS))
    k5, g5 = p5_kernel()
    ks.append((k5, g5, 256, 0))
    path = sys.argv[1] if len(sys.argv) > 1 else os.path.join(os.path.dirname(os.path.abspath(__file__)), "..", "cdna_kernels", NAME + ".s")
    build(ks, path)
```

```python
import os
import sys

sys.path.insert(0, os.path.dirname(os.path.abspath(__file__)))
from asmlib import Kernel

NAME = "sequential_preLN__ssm_conv_h3__dense_activation_relu__prompt"
S, D, F = 2048, 576, 4608
TB = S * D * 2

WS_UR = 0x0
WS_QT = 0x240000
WS_HT = 0x480000
WS_HF = 0x6C0000
WS_M1 = 0x900000
WS_RS1 = 0x902000
WS_C1 = 0x904000
WS_W1F = 0xA00000
WS_W2F = 0xF10000
WS_PART = 0x1500000
WF_BYTES = 288 * 18 * 1024

P_Q, P_K, P_V, P_SK, P_SSM, P_SD, P_X, P_W1, P_W2, P_OUT, P_DBG, P_WS = [16 + 2 * i for i in range(12)]
MASKHI = "0xffff0000"


def load_kernargs(k):
    k("s_load_dwordx16 s[16:31], s[0:1], 0")
    k("s_load_dwordx8 s[32:39], s[0:1], 64")


def srd(k, dst, ptr, nbytes, off=0, soff=None):
    if off or soff is not None:
        if off:
            k(f"s_add_u32 s{dst}, s{ptr}, {hex(off)}")
            k(f"s_addc_u32 s{dst + 1}, s{ptr + 1}, 0")
            if soff is not None:
                k(f"s_add_u32 s{dst}, s{dst}, s{soff}")
                k(f"s_addc_u32 s{dst + 1}, s{dst + 1}, 0")
        else:
            k(f"s_add_u32 s{dst}, s{ptr}, s{soff}")
            k(f"s_addc_u32 s{dst + 1}, s{ptr + 1}, 0")
    else:
        k(f"s_mov_b32 s{dst}, s{ptr}")
        k(f"s_mov_b32 s{dst + 1}, s{ptr + 1}")
    k(f"s_mov_b32 s{dst + 2}, {hex(nbytes)}")
    k(f"s_mov_b32 s{dst + 3}, 0x20000")


INSTR = os.environ.get("INSTR", "0") == "1"
WS_STAMP = 0x3000000


def stamp_init(k, kid, vtmp):
    if not INSTR:
        return
    k.vstamp = vtmp
    srd(k, 92, P_WS, 0x400000, off=WS_STAMP)
    k(f"v_lshrrev_b32 v{vtmp}, 6, v0")
    k(f"v_readfirstlane_b32 s88, v{vtmp}")
    k(f"s_lshl_b32 s89, s2, 2")
    k(f"s_add_u32 s88, s88, s89")
    k(f"s_add_u32 s88, s88, {kid * 4096}")
    k(f"s_lshl_b32 s88, s88, 6")
    k(f"v_mov_b32 v{vtmp + 1}, 0")


def stamp(k, slot):
    if not INSTR:
        return
    v = k.vstamp
    k("s_memrealtime s[90:91]")
    k("s_mov_b64 s[96:97], exec")
    k("s_mov_b64 exec, 1")
    k("s_waitcnt lgkmcnt(0)")
    k(f"v_mov_b32 v{v}, s90")
    k(f"buffer_store_dword v{v}, v{v + 1}, {sr(92)}, s88 offen offset:{4 * slot}")
    k("s_mov_b64 exec, s[96:97]")


def vr(a, n):
    return f"v[{a}:{a + n - 1}]"


def ar(a, n):
    return f"a[{a}:{a + n - 1}]"


def sr(a, n=4):
    return f"s[{a}:{a + n - 1}]"


def unpack(k, lo, hi, src):
    k(f"v_lshlrev_b32 v{lo}, 16, v{src}")
    k(f"v_and_b32 v{hi}, {MASKHI}, v{src}")


def round_pair(k, a, tmp):
    k(f"v_cvt_pk_bf16_f32 v{tmp}, v{a}, v{a + 1}")
    unpack(k, a, a + 1, tmp)


def wprep_role(k, which, s_blk):
    RP = 9216 if which == 1 else 1152
    NKK = 18 if which == 1 else 9
    k("v_lshrrev_b32 v1, 6, v0")
    k("v_and_b32 v2, 63, v0")
    k("v_readfirstlane_b32 s50, v1")
    k("s_waitcnt lgkmcnt(0)")
    stamp_init(k, which - 1, 100)
    stamp(k, 0)
    if which == 1:
        k(f"s_lshl_b32 s51, s{s_blk}, 7")
        srd(k, 40, P_W1, D * F * 2)
        srd(k, 44, P_WS, WF_BYTES, off=WS_W1F)
        srd(k, 56, P_WS, F * 4, off=WS_C1)
    else:
        k(f"s_and_b32 s62, s{s_blk}, 1")
        k(f"s_lshr_b32 s63, s{s_blk}, 1")
        k(f"s_mul_i32 s52, s63, 7282")
        k("s_lshr_b32 s52, s52, 16")
        k("s_mul_i32 s53, s52, 9")
        k(f"s_sub_u32 s53, s63, s53")
        k(f"s_mul_i32 s51, s52, {576 * 1152}")
        k("s_lshl_b32 s54, s53, 7")
        k("s_add_u32 s51, s51, s54")
        k(f"s_mul_i32 s54, s62, {288 * 1152}")
        k("s_add_u32 s51, s51, s54")
        srd(k, 40, P_W2, D * F * 2)
        srd(k, 44, P_WS, WF_BYTES, off=WS_W2F)
    k("v_lshrrev_b32 v3, 3, v2")
    k(f"v_mul_u32_u24 v3, {RP}, v3")
    k("v_lshrrev_b32 v4, 3, v2")
    k("v_and_b32 v4, 2, v4")
    k("s_and_b32 s54, s50, 1")
    k("s_lshl_b32 s54, s54, 2")
    k("v_or_b32 v4, s54, v4")
    k("v_and_b32 v5, 7, v2")
    k("v_xor_b32 v4, v4, v5")
    k("v_lshl_add_u32 v3, v4, 4, v3")
    k(f"s_mul_i32 s54, s50, {8 * RP}")
    k("s_add_u32 s51, s51, s54")
    k("s_lshl_b32 s55, s50, 10")
    for i in range(NKK):
        k(f"s_add_u32 m0, s55, {i * 4096}")
        k(f"buffer_load_dwordx4 v3, {sr(40)}, s51 offen lds")
        if i != NKK - 1:
            k(f"s_add_u32 s51, s51, {32 * RP}")
    k("v_lshrrev_b32 v4, 4, v2")
    k("v_bfe_u32 v5, v2, 2, 2")
    k("v_and_b32 v6, 3, v2")
    k("v_lshl_add_u32 v7, v4, 3, v5")
    k("v_lshlrev_b32 v7, 7, v7")
    k("v_lshrrev_b32 v8, 1, v5")
    k("v_and_b32 v9, 1, v4")
    k("v_lshl_or_b32 v8, v9, 1, v8")
    if which == 1:
        k("v_xor_b32 v8, s50, v8")
        k("v_lshl_add_u32 v7, v8, 5, v7")
        k("v_lshl_add_u32 v7, v6, 3, v7")
    else:
        k("s_lshr_b32 s54, s50, 1")
        k("s_lshl_b32 s54, s54, 2")
        k("v_or_b32 v6, s54, v6")
        k("v_lshlrev_b32 v8, 1, v8")
        k("v_xor_b32 v6, v6, v8")
        k("v_lshl_add_u32 v7, v6, 4, v7")
        k("s_and_b32 s54, s50, 1")
        k("s_lshl_b32 s54, s54, 3")
        k("v_add_u32 v7, s54, v7")
    k("v_add_u32 v10, 0x10000, v7")
    k("v_lshlrev_b32 v11, 4, v2")
    if which == 1:
        k(f"s_lshl_b32 s54, s{s_blk}, 2")
        k("s_add_u32 s54, s54, s50")
    else:
        k("s_lshl_b32 s54, s53, 1")
        k("s_lshr_b32 s55, s50, 1")
        k("s_add_u32 s54, s54, s55")
        k("s_and_b32 s55, s50, 1")
        k("s_lshr_b32 s60, s54, 2")
        k("s_mul_i32 s60, s60, 9")
        k("s_and_b32 s61, s54, 3")
        k("s_lshl_b32 s61, s61, 1")
        k("s_add_u32 s60, s60, s61")
        k("s_add_u32 s60, s60, s55")
        k("s_sub_u32 s61, s54, 16")
        k("s_lshl_b32 s61, s61, 1")
        k("s_add_u32 s61, s61, s55")
        k("s_mul_i32 s61, s61, 9")
        k("s_add_u32 s61, s61, 8")
        k("s_cmp_lt_u32 s54, 16")
        k("s_cselect_b32 s54, s60, s61")
        k("s_mul_i32 s55, s52, 36")
        k("s_add_u32 s54, s54, s55")
    k("s_mul_i32 s55, s54, 18432")
    if which == 2:
        k("s_mul_i32 s62, s62, 9216")
        k("s_add_u32 s55, s55, s62")
    if which == 1:
        for i in range(4):
            k(f"v_mov_b32 v{12 + i}, 0x3f803f80")
    k("s_waitcnt vmcnt(0)")
    stamp(k, 1)
    k("s_barrier")
    FR = 20
    for kk in range(NKK):
        a = 7 if kk < 16 else 10
        off = (kk % 16) * 4096
        k(f"ds_read_b64_tr_b16 {vr(FR + 4 * kk, 2)}, v{a} offset:{off}")
        k(f"ds_read_b64_tr_b16 {vr(FR + 4 * kk + 2, 2)}, v{a} offset:{off + 512}")
    for kk in range(NKK):
        k(f"s_waitcnt lgkmcnt({min(15, 2 * (NKK - 1 - kk))})")
        k(f"buffer_store_dwordx4 {vr(FR + 4 * kk, 4)}, v11, {sr(44)}, s55 offen offset:{(kk % 4) * 1024}")
        if kk % 4 == 3:
            k("s_add_u32 s55, s55, 4096")
        if which == 1:
            c = "0" if kk == 0 else vr(16, 4)
            k(f"v_mfma_f32_16x16x32_bf16 {vr(16, 4)}, {vr(FR + 4 * kk, 4)}, {vr(12, 4)}, {c}")
    if which == 1:
        k("v_and_b32 v4, 15, v2")
        k("v_cmp_eq_u32 vcc, 0, v4")
        k("v_lshrrev_b32 v4, 4, v2")
        k("v_lshlrev_b32 v4, 4, v4")
        k("s_lshl_b32 s54, s54, 6")
        k("s_and_saveexec_b64 s[60:61], vcc")
        k(f"buffer_store_dwordx4 {vr(16, 4)}, v4, {sr(56)}, s54 offen")
        k("s_mov_b64 exec, -1")
    stamp(k, 2)
    if INSTR:
        k("s_waitcnt vmcnt(0)")
    stamp(k, 3)
    k("s_endpgm")


def p1_kernel():
    k = Kernel("p1_prep_kernel")
    NW, NT, NS = 72, 288, 128
    load_kernargs(k)
    l_tile, l_stat, l_end = k.label("tile"), k.label("stat"), k.label("end")
    k(f"s_cmp_ge_u32 s2, {NW + NT + NS}")
    k(f"s_cbranch_scc1 {l_end}")
    k(f"s_cmp_ge_u32 s2, {NW + NT}")
    k(f"s_cbranch_scc1 {l_stat}")
    k(f"s_cmp_ge_u32 s2, {NW}")
    k(f"s_cbranch_scc1 {l_tile}")
    wprep_role(k, 1, 2)

    k(f"{l_tile}:")
    k(f"s_sub_u32 s3, s2, {NW}")
    k("s_and_b32 s4, s3, 31")
    k("s_lshr_b32 s5, s3, 5")
    k(f"s_mul_i32 s6, s4, {64 * 1152}")
    k("s_lshl_b32 s7, s5, 7")
    k("s_add_u32 s6, s6, s7")
    k("v_and_b32 v1, 7, v0")
    k("v_lshrrev_b32 v2, 3, v0")
    k("v_mul_u32_u24 v3, 2304, v2")
    k("v_lshl_add_u32 v3, v1, 4, v3")
    k("v_add_u32 v3, s6, v3")
    k("v_add_u32 v4, -3456, v3")
    k("v_add_u32 v5, -2304, v3")
    k("v_add_u32 v6, -1152, v3")
    k("s_lshl_b32 s8, s5, 9")
    k("v_lshl_add_u32 v7, v1, 6, s8")
    k("v_lshrrev_b32 v164, 6, v0")
    k("s_waitcnt lgkmcnt(0)")
    stamp_init(k, 0, 170)
    stamp(k, 0)
    srd(k, 40, P_K, TB)
    srd(k, 44, P_V, TB)
    srd(k, 48, P_Q, TB)
    srd(k, 52, P_SK, D * 8)
    srd(k, 56, P_WS, TB, off=WS_UR)
    srd(k, 60, P_WS, TB, off=WS_QT)
    KD, VD, QD, TD, W, KF, VF, T0, OUT = 8, 28, 36, 44, 60, 92, 132, 148, 156
    for i in range(4):
        k(f"buffer_load_dwordx4 {vr(TD + 4 * i, 4)}, v7, {sr(52)}, 0 offen offset:{16 * i}")
    k(f"buffer_load_dwordx4 {vr(KD, 4)}, v4, {sr(40)}, 0 offen")
    k(f"buffer_load_dwordx4 {vr(KD + 4, 4)}, v5, {sr(40)}, 0 offen")
    k(f"buffer_load_dwordx4 {vr(KD + 8, 4)}, v6, {sr(40)}, 0 offen")
    k(f"buffer_load_dwordx4 {vr(KD + 12, 4)}, v3, {sr(40)}, 0 offen")
    k(f"buffer_load_dwordx4 {vr(KD + 16, 4)}, v3, {sr(40)}, 0 offen offset:1152")
    k(f"buffer_load_dwordx4 {vr(VD, 4)}, v3, {sr(44)}, 0 offen")
    k(f"buffer_load_dwordx4 {vr(VD + 4, 4)}, v3, {sr(44)}, 0 offen offset:1152")
    k(f"buffer_load_dwordx4 {vr(QD, 4)}, v3, {sr(48)}, 0 offen")
    k(f"buffer_load_dwordx4 {vr(QD + 4, 4)}, v3, {sr(48)}, 0 offen offset:1152")
    k("v_readfirstlane_b32 s9, v164")
    k("v_and_b32 v4, 1, v2")
    k("v_and_b32 v5, 4, v2")
    k("v_lshl_or_b32 v4, v4, 1, v5")
    k("v_xor_b32 v4, v4, v1")
    k("v_lshlrev_b32 v5, 8, v2")
    k("v_lshl_add_u32 v5, v4, 4, v5")
    k("v_xor_b32 v4, 6, v4")
    k("v_xor_b32 v6, 31, v2")
    k("v_lshlrev_b32 v6, 8, v6")
    k("v_lshl_add_u32 v6, v4, 4, v6")
    k("v_and_b32 v164, 63, v0")
    k("v_lshrrev_b32 v165, 4, v164")
    k("v_bfe_u32 v166, v164, 2, 2")
    k("v_and_b32 v167, 3, v164")
    k("v_lshl_add_u32 v168, v165, 3, v166")
    k("v_lshlrev_b32 v168, 7, v168")
    k("v_lshrrev_b32 v166, 1, v166")
    k("v_and_b32 v169, 1, v165")
    k("v_lshl_or_b32 v166, v169, 1, v166")
    k("v_xor_b32 v166, s9, v166")
    k("v_lshl_add_u32 v168, v166, 5, v168")
    k("v_lshl_add_u32 v168, v167, 3, v168")
    k("v_and_b32 v164, 15, v164")
    k("v_lshlrev_b32 v164, 12, v164")
    k("v_lshl_add_u32 v164, v165, 4, v164")
    k("s_lshl_b32 s10, s5, 6")
    k("s_lshl_b32 s11, s9, 4")
    k("s_add_u32 s10, s10, s11")
    k("s_lshl_b32 s10, s10, 12")
    k("s_lshl_b32 s11, s4, 7")
    k("s_add_u32 s12, s10, s11")
    k(f"s_sub_u32 s13, {2 * 1984}, s11")
    k("s_add_u32 s13, s13, s10")
    k("s_waitcnt vmcnt(9)")
    for c in range(8):
        unpack(k, W + 0 * 8 + c, W + 1 * 8 + c, TD + 2 * c)
        unpack(k, W + 2 * 8 + c, W + 3 * 8 + c, TD + 2 * c + 1)
    k("s_waitcnt vmcnt(4)")
    for r in range(5):
        for i in range(4):
            unpack(k, KF + 8 * r + 2 * i, KF + 8 * r + 2 * i + 1, KD + 4 * r + i)
    k("s_waitcnt vmcnt(0)")
    stamp(k, 1)
    k(f"ds_write_b128 v5, {vr(QD, 4)} offset:8192")
    k(f"ds_write_b128 v5, {vr(QD + 4, 4)} offset:{8192 + 128}")
    for ro in range(2):
        for i in range(4):
            unpack(k, VF + 8 * ro + 2 * i, VF + 8 * ro + 2 * i + 1, VD + 4 * ro + i)
    A, B, T = T0, T0 + 2, T0 + 4
    for ro in range(2):
        for i in range(4):
            k(f"v_pk_mul_f32 {vr(A, 2)}, {vr(KF + 8 * ro + 2 * i, 2)}, {vr(W + 24 + 2 * i, 2)}")
            round_pair(k, A, T)
            for t in range(1, 4):
                k(f"v_pk_mul_f32 {vr(B, 2)}, {vr(KF + 8 * (ro + t) + 2 * i, 2)}, {vr(W + 8 * (3 - t) + 2 * i, 2)}")
                round_pair(k, B, T)
                k(f"v_pk_add_f32 {vr(A, 2)}, {vr(A, 2)}, {vr(B, 2)}")
                round_pair(k, A, T)
            k(f"v_pk_mul_f32 {vr(A, 2)}, {vr(A, 2)}, {vr(VF + 8 * ro + 2 * i, 2)}")
            k(f"v_cvt_pk_bf16_f32 v{OUT + 4 * ro + i}, v{A}, v{A + 1}")
        k(f"ds_write_b128 v6, {vr(OUT + 4 * ro, 4)} offset:{128 * (1 - ro)}")
    k("s_waitcnt lgkmcnt(0)")
    stamp(k, 2)
    k("s_barrier")
    R0 = 8
    for img in range(2):
        for h in range(2):
            for e in range(2):
                k(f"ds_read_b64_tr_b16 {vr(R0 + 8 * img + 4 * h + 2 * e, 2)}, v168 offset:{img * 8192 + h * 4096 + e * 512}")
    for img in range(2):
        for h in range(2):
            k(f"s_waitcnt lgkmcnt({6 - 4 * img - 2 * h})")
            k(f"buffer_store_dwordx4 {vr(R0 + 8 * img + 4 * h, 4)}, v164, {sr(56 + 4 * img)}, s{13 - img} offen offset:{64 * h}")
    stamp(k, 3)
    if INSTR:
        k("s_waitcnt vmcnt(0)")
    stamp(k, 4)
    k("s_endpgm")

    k(f"{l_stat}:")
    k(f"s_sub_u32 s3, s2, {NW + NT}")
    k("v_lshrrev_b32 v1, 4, v0")
    k("v_and_b32 v2, 15, v0")
    k("s_lshl_b32 s4, s3, 4")
    k("v_add_u32 v1, s4, v1")
    k("v_mul_u32_u24 v3, 1152, v1")
    k("v_lshl_add_u32 v3, v2, 3, v3")
    k("s_waitcnt lgkmcnt(0)")
    stamp_init(k, 0, 170)
    stamp(k, 0)
    srd(k, 40, P_Q, TB)
    srd(k, 44, P_WS, 16384, off=WS_M1)
    X, XF = 8, 28
    for j in range(9):
        k(f"buffer_load_dwordx2 {vr(X + 2 * j, 2)}, v3, {sr(40)}, 0 offen offset:{128 * j}")
    ln_stats(k, X, XF, 18, 4, 6, 576, reduce16=True)
    stamp(k, 1)
    k("v_cmp_eq_u32 vcc, 0, v2")
    k("v_lshlrev_b32 v1, 2, v1")
    k("s_and_saveexec_b64 s[60:61], vcc")
    k(f"buffer_store_dword v4, v1, {sr(44)}, 0 offen")
    k(f"v_add_u32 v1, 0x2000, v1")
    k(f"buffer_store_dword v5, v1, {sr(44)}, 0 offen")
    k(f"{l_end}:")
    k("s_endpgm")
    return k, NW + NT + NS


def dpp_reduce16(k, v, t):
    for n in (8, 4, 2, 1):
        k(f"v_add_f32_dpp v{v}, v{v}, v{v} row_ror:{n} row_mask:0xf bank_mask:0xf")


def finish_stats(k, vmean, vvar, t):
    k(f"v_cvt_pk_bf16_f32 v{t}, v{vmean}, v{vvar}")
    unpack(k, vmean, vvar, t)
    k(f"v_add_f32 v{vvar}, 0x3727c5ac, v{vvar}")
    k(f"v_cvt_pk_bf16_f32 v{t}, v{vvar}, v{vvar}")
    k(f"v_and_b32 v{vvar}, {MASKHI}, v{t}")
    k(f"v_sqrt_f32 v{vvar}, v{vvar}")
    k(f"v_cvt_pk_bf16_f32 v{t}, v{vvar}, v{vvar}")
    k(f"v_and_b32 v{vvar}, {MASKHI}, v{t}")
    k(f"v_rcp_f32 v{vvar}, v{vvar}")


def ln_stats(k, X, XF, ndw, R, T, n, reduce16):
    for j in range(ndw):
        if j % 2 == 0:
            k(f"s_waitcnt vmcnt({(ndw - j) // 2 - 1})")
        unpack(k, XF + 2 * j, XF + 2 * j + 1, X + j)
        if j == 1:
            k(f"v_pk_add_f32 {vr(R, 2)}, {vr(XF, 2)}, {vr(XF + 2, 2)}")
        elif j > 1:
            k(f"v_pk_add_f32 {vr(R, 2)}, {vr(R, 2)}, {vr(XF + 2 * j, 2)}")
    k(f"v_add_f32 v{R}, v{R}, v{R + 1}")
    dpp_reduce16(k, R, T)
    k(f"v_mul_f32 v{R}, {hex(f32bits(1.0 / n))}, v{R}")
    k(f"v_mov_b32 v{R + 1}, v{R}")
    for j in range(ndw):
        k(f"v_pk_add_f32 {vr(XF + 2 * j, 2)}, {vr(XF + 2 * j, 2)}, {vr(R, 2)} neg_lo:[0,1] neg_hi:[0,1]")
        if j == 0:
            k(f"v_pk_mul_f32 {vr(T, 2)}, {vr(XF, 2)}, {vr(XF, 2)}")
        else:
            k(f"v_pk_fma_f32 {vr(T, 2)}, {vr(XF + 2 * j, 2)}, {vr(XF + 2 * j, 2)}, {vr(T, 2)}")
    k(f"v_add_f32 v{R + 1}, v{T}, v{T + 1}")
    dpp_reduce16(k, R + 1, T)
    k(f"v_mul_f32 v{R + 1}, {hex(f32bits(1.0 / n))}, v{R + 1}")
    finish_stats(k, R, R + 1, T)


def f32bits(x):
    import struct
    return struct.unpack("<I", struct.pack("<f", x))[0]


class Cnt:
    def __init__(self, k, name, maxv):
        self.k, self.name, self.maxv = k, name, maxv
        self.issued = 0
        self.done = 0

    def issue(self):
        self.issued += 1
        return self.issued - 1

    def need(self, op):
        if op < self.done:
            return
        n = self.issued - 1 - op
        n = min(n, self.maxv)
        self.k(f"s_waitcnt {self.name}({n})")
        self.done = self.issued - n

    def all(self):
        if self.done < self.issued:
            self.k(f"s_waitcnt {self.name}(0)")
            self.done = self.issued


P2_U = 33280
P2_LDS = 37888


def p2_kernel():
    k = Kernel("p2_conv_kernel")
    NW, NC = 144, 576
    load_kernargs(k)
    l_conv, l_end = k.label("conv"), k.label("end")
    k(f"s_cmp_ge_u32 s2, {NW + NC}")
    k(f"s_cbranch_scc1 {l_end}")
    k(f"s_cmp_ge_u32 s2, {NW}")
    k(f"s_cbranch_scc1 {l_conv}")
    wprep_role(k, 2, 2)

    k(f"{l_conv}:")
    k(f"s_sub_u32 s3, s2, {NW}")
    k("s_lshl_b32 s4, s3, 12")
    k("v_lshrrev_b32 v1, 6, v0")
    k("v_and_b32 v2, 63, v0")
    k("v_readfirstlane_b32 s5, v1")
    k("v_lshlrev_b32 v3, 4, v0")
    k("v_add_u32 v4, -16, v3")
    k("s_lshr_b32 s6, s3, 1")
    k("s_lshl_b32 s6, s6, 2")
    k("s_waitcnt lgkmcnt(0)")
    stamp_init(k, 1, 150)
    stamp(k, 0)
    k(f"s_load_dword s7, s[{P_SD}:{P_SD + 1}], s6")
    srd(k, 40, P_SSM, 4096, soff=4)
    srd(k, 44, P_WS, TB, off=WS_UR)
    srd(k, 48, P_WS, TB, off=WS_QT)
    srd(k, 52, P_WS, 16384, off=WS_M1)
    srd(k, 56, P_WS, TB, off=WS_HT)
    ACC = 16
    BE, BO = 48, 80
    AR = 112
    QD = 128
    M1R, RSR = 132, 140
    WD = BE
    WB = BE + 8
    AA = BE + 16
    AB = BE + 24
    vm = Cnt(k, "vmcnt", 63)
    k(f"buffer_load_dwordx4 {vr(WD, 4)}, v4, {sr(40)}, 0 offen")
    o_w0 = vm.issue()
    k(f"buffer_load_dwordx4 {vr(WD + 4, 4)}, v3, {sr(40)}, 0 offen")
    o_w1 = vm.issue()
    k("s_lshl_b32 s8, s5, 10")
    k(f"s_add_u32 m0, s8, {P2_U}")
    k(f"buffer_load_dwordx4 v3, {sr(44)}, s4 offen lds")
    o_u = vm.issue()
    k("v_and_b32 v5, 15, v2")
    k("v_lshrrev_b32 v6, 4, v2")
    k("v_lshlrev_b32 v7, 5, v5")
    k("v_lshl_add_u32 v7, v6, 3, v7")
    k("s_add_u32 s9, s4, s8")
    k(f"buffer_load_dwordx2 {vr(QD, 2)}, v7, {sr(48)}, s9 offen")
    o_q0 = vm.issue()
    k(f"buffer_load_dwordx2 {vr(QD + 2, 2)}, v7, {sr(48)}, s9 offen offset:512")
    o_q1 = vm.issue()
    k("v_lshlrev_b32 v8, 1, v7")
    k("s_lshl_b32 s10, s5, 11")
    k("s_add_u32 s11, s10, 0x2000")
    k(f"buffer_load_dwordx4 {vr(M1R, 4)}, v8, {sr(52)}, s10 offen")
    vm.issue()
    k(f"buffer_load_dwordx4 {vr(M1R + 4, 4)}, v8, {sr(52)}, s10 offen offset:1024")
    vm.issue()
    k(f"buffer_load_dwordx4 {vr(RSR, 4)}, v8, {sr(52)}, s11 offen")
    vm.issue()
    k(f"buffer_load_dwordx4 {vr(RSR + 4, 4)}, v8, {sr(52)}, s11 offen offset:1024")
    o_st = vm.issue()

    def cbase(rp):
        return (1041 if rp & 1 else 0) + 260 * (rp >> 1)

    k("v_and_b32 v9, 1, v2")
    k("v_mul_u32_u24 v9, 1041, v9")
    k("v_bfe_u32 v10, v2, 1, 2")
    k("v_mul_u32_u24 v10, 260, v10")
    k("v_add_u32 v9, v9, v10")
    k("v_lshlrev_b32 v10, 4, v9")
    k(f"v_lshlrev_b32 v11, 4, v2")
    k(f"v_add_u32 v11, {P2_U + 4096 - 128}, v11")
    k("v_cmp_gt_u32 vcc, 8, v2")
    k("v_cndmask_b32 v10, v11, v10, vcc")
    for i in range(4):
        k(f"v_mov_b32 v{12 + i}, 0")
    k("v_cmp_gt_u32 vcc, 38, v2")
    k("s_and_saveexec_b64 s[12:13], vcc")
    k(f"ds_write_b128 v10, {vr(12, 4)}")
    k("s_mov_b64 exec, s[12:13]")
    k("v_lshrrev_b32 v10, 3, v5")
    k("v_add3_u32 v9, v9, v6, v10")
    k("s_lshl_b32 s12, s5, 2")
    k("v_add_u32 v9, s12, v9")
    k("v_lshlrev_b32 v9, 4, v9")
    k("s_lshl_b32 s12, s5, 6")
    k(f"s_add_u32 s12, s12, {P2_U + 4064 - 3584}")
    k("v_lshlrev_b32 v10, 4, v6")
    k("v_add_u32 v10, s12, v10")
    k("v_lshlrev_b32 v11, 5, v5")
    k("v_sub_u32 v10, v10, v11")
    k(f"s_sub_u32 s12, {P2_U + 4088 - 512}, s8")
    k("v_sub_u32 v11, s12, v7")
    k("v_lshlrev_b32 v12, 4, v2")
    k("v_add_u32 v13, s8, v12")
    k("s_lshl_b32 s12, s5, 13")
    k("v_add_u32 v12, s12, v12")
    vm.need(o_w1)
    stamp(k, 1)
    for i in range(6):
        k(f"v_mov_b32 v{WB + i}, v{WD + 1 + i}")
    for i in range(7):
        k(f"v_alignbit_b32 v{AA + i}, v{WD + i + 1}, v{WD + i}, 16")
    for i in range(6):
        k(f"v_alignbit_b32 v{AB + i}, v{WD + i + 2}, v{WD + i + 1}, 16")
    srcs = {1: AA, 3: AB, 5: AA + 2, 7: AB + 2, 2: WB, 4: WD + 2, 6: WB + 2, 8: WD + 4}
    for rp in range(8):
        k(f"ds_write_b128 v3, {vr(srcs[rp + 1], 4)} offset:{(cbase(rp) + 1) * 16}")
    vm.need(o_u)
    k("s_waitcnt lgkmcnt(0)")
    stamp(k, 2)
    k("s_barrier")
    stamp(k, 3)
    k("s_and_b32 s12, s3, 1")
    k("s_lshl_b32 s14, s7, 16")
    k(f"s_and_b32 s15, s7, {MASKHI}")
    k("s_cmp_eq_u32 s12, 1")
    k("s_cselect_b32 s14, s15, s14")
    k("s_mov_b32 s15, s14")

    lg = Cnt(k, "lgkmcnt", 15)
    order = list(range(0, 16, 2)) + list(range(1, 16, 2))
    a_op, b_op = {}, {}

    def rdA(ia):
        a = order[ia]
        k(f"ds_read_b128 {vr(AR + 4 * (ia % 4), 4)}, v9 offset:{256 * a}")
        a_op[ia] = lg.issue()

    def breg(beta):
        return (BE + 4 * (beta // 2)) if beta % 2 == 0 else (BO + 4 * ((beta + 1) // 2))

    def rdB(beta):
        k(f"ds_read_b128 {vr(breg(beta), 4)}, v10 offset:{256 * (14 - beta)}")
        b_op[beta] = lg.issue()

    rdA(0)
    for beta in range(0, 16, 2):
        rdB(beta)
    rdA(1)
    rdA(2)
    rdA(3)
    odd_left = list(range(-1, 15, 2))
    started = set()
    for ia in range(16):
        a = order[ia]
        betas = [b for b in range(-1 if a % 2 else 0, 15 - a, 2)]
        lg.need(a_op[ia])
        for bi, beta in enumerate(betas):
            t = (a + beta) // 2
            lg.need(b_op[beta])
            c = vr(ACC + 4 * t, 4) if t in started else "0"
            started.add(t)
            k(f"v_mfma_f32_16x16x32_bf16 {vr(ACC + 4 * t, 4)}, {vr(AR + 4 * (ia % 4), 4)}, {vr(breg(beta), 4)}, {c}")
            if ia in (1, 2) and odd_left and bi < 4:
                rdB(odd_left.pop(0))
        if ia + 4 < 16:
            rdA(ia + 4)
    stamp(k, 4)
    k("s_barrier")
    for t in range(8):
        k(f"ds_write_b128 v13, {vr(ACC + 4 * t, 4)} offset:{t * 4096}")
    k("s_waitcnt lgkmcnt(0)")
    k("s_barrier")
    stamp(k, 5)
    RD = BE
    KV = BO
    lg = Cnt(k, "lgkmcnt", 15)
    ops = {}
    for tt in range(2):
        k(f"ds_read_b64 {vr(KV + 2 * tt, 2)}, v11 offset:{512 * (1 - tt)}")
        ops[("kv", tt)] = lg.issue()
        for s_ in range(4):
            k(f"ds_read_b128 {vr(RD + 16 * tt + 4 * s_, 4)}, v12 offset:{tt * 4096 + s_ * 1024}")
            ops[(tt, s_)] = lg.issue()
    vm.need(o_st)
    Y, KF, QF, T, H = ACC, ACC + 4, ACC + 8, ACC + 12, ACC + 14
    for tt in range(2):
        lg.need(ops[("kv", tt)])
        k(f"v_and_b32 v{KF}, {MASKHI}, v{KV + 2 * tt + 1}")
        k(f"v_lshlrev_b32 v{KF + 1}, 16, v{KV + 2 * tt + 1}")
        k(f"v_and_b32 v{KF + 2}, {MASKHI}, v{KV + 2 * tt}")
        k(f"v_lshlrev_b32 v{KF + 3}, 16, v{KV + 2 * tt}")
        X = ACC + 16
        for p in range(2):
            k(f"v_pk_mul_f32 {vr(KF + 2 * p, 2)}, {vr(KF + 2 * p, 2)}, s[14:15]")
            round_pair(k, KF + 2 * p, T)
            unpack(k, QF + 2 * p, QF + 2 * p + 1, QD + 2 * tt + p)
            k(f"v_pk_add_f32 {vr(X + 2 * p, 2)}, {vr(QF + 2 * p, 2)}, {vr(M1R + 4 * tt + 2 * p, 2)} neg_lo:[0,1] neg_hi:[0,1]")
            round_pair(k, X + 2 * p, T)
            k(f"v_pk_mul_f32 {vr(X + 2 * p, 2)}, {vr(X + 2 * p, 2)}, {vr(RSR + 4 * tt + 2 * p, 2)}")
            round_pair(k, X + 2 * p, T)
        lg.need(ops[(tt, 1)])
        r0 = RD + 16 * tt
        for p in range(2):
            k(f"v_pk_add_f32 {vr(Y + 2 * p, 2)}, {vr(r0 + 2 * p, 2)}, {vr(r0 + 4 + 2 * p, 2)}")
        lg.need(ops[(tt, 3)])
        for p in range(2):
            k(f"v_pk_add_f32 {vr(Y + 2 * p, 2)}, {vr(Y + 2 * p, 2)}, {vr(r0 + 8 + 2 * p, 2)}")
            k(f"v_pk_add_f32 {vr(Y + 2 * p, 2)}, {vr(Y + 2 * p, 2)}, {vr(r0 + 12 + 2 * p, 2)}")
            round_pair(k, Y + 2 * p, T)
            k(f"v_pk_add_f32 {vr(Y + 2 * p, 2)}, {vr(Y + 2 * p, 2)}, {vr(KF + 2 * p, 2)}")
            round_pair(k, Y + 2 * p, T)
            k(f"v_pk_mul_f32 {vr(Y + 2 * p, 2)}, {vr(Y + 2 * p, 2)}, {vr(X + 2 * p, 2)}")
            round_pair(k, Y + 2 * p, T)
            k(f"v_pk_add_f32 {vr(Y + 2 * p, 2)}, {vr(Y + 2 * p, 2)}, {vr(QF + 2 * p, 2)}")
            k(f"v_cvt_pk_bf16_f32 v{H + 8 * tt + p}, v{Y + 2 * p}, v{Y + 2 * p + 1}")
        k(f"buffer_store_dwordx2 {vr(H + 8 * tt, 2)}, v7, {sr(56)}, s9 offen offset:{512 * tt}")
    stamp(k, 6)
    if INSTR:
        k("s_waitcnt vmcnt(0)")
    stamp(k, 7)
    k(f"{l_end}:")
    k("s_endpgm")
    return k, NW + NC


P4_HID = 73728
P4_HP = 1184
P4_ST = P4_HID + 64 * P4_HP
P4_C1 = P4_ST + 512
P4_LDS = P4_C1 + 4096


def p4_kernel():
    k = Kernel("p4_mlp_kernel")
    load_kernargs(k)
    l_end = k.label("end")
    k("s_cmp_ge_u32 s2, 256")
    k(f"s_cbranch_scc1 {l_end}")
    B0 = 184
    RING = 112
    ACC = 96
    D1, D2 = 88, 92
    ONES = 84
    C1R = 80
    MR, RSR = 72, 76
    TMP = 56
    VT, VH, VHC = 40, 44, 48
    VP = 52

    def breg(kk, ct):
        return vr(B0 + 4 * kk, 4) if ct == 0 else ar((ct - 1) * 72 + 4 * kk, 4)

    def bhalf(kk, ct, h):
        return vr(B0 + 4 * kk + 2 * h, 2) if ct == 0 else ar((ct - 1) * 72 + 4 * kk + 2 * h, 2)

    k("s_and_b32 s3, s2, 7")
    k("s_lshr_b32 s4, s2, 3")
    k("v_lshrrev_b32 v1, 6, v0")
    k("v_and_b32 v2, 63, v0")
    k("v_readfirstlane_b32 s5, v1")
    k("v_lshrrev_b32 v3, 3, v2")
    k("v_lshlrev_b32 v4, 12, v3")
    k("v_and_b32 v3, 2, v3")
    k("s_and_b32 s6, s5, 1")
    k("s_lshl_b32 s6, s6, 2")
    k("v_or_b32 v3, s6, v3")
    k("v_and_b32 v5, 7, v2")
    k("v_xor_b32 v3, v3, v5")
    k("v_lshl_add_u32 v3, v3, 4, v4")
    k("v_lshlrev_b32 v4, 4, v2")
    k("s_lshl_b32 s6, s5, 15")
    k("s_lshl_b32 s7, s4, 7")
    k("s_add_u32 s6, s6, s7")
    k("s_lshl_b32 s7, s5, 10")
    k("s_mul_i32 s8, s4, 7282")
    k("s_lshr_b32 s8, s8, 16")
    k("s_mul_i32 s8, s8, 9")
    k("s_sub_u32 s8, s4, s8")
    k("s_mul_i32 s9, s3, 36")
    k("s_mul_i32 s10, s5, 9")
    k("s_add_u32 s9, s9, s10")
    k("s_lshl_b32 s11, s9, 6")
    k("s_mul_i32 s9, s9, 18432")
    k("s_waitcnt lgkmcnt(0)")
    stamp_init(k, 2, 38)
    stamp(k, 0)
    srd(k, 40, P_WS, TB, off=WS_HT)
    srd(k, 44, P_WS, 2 * WF_BYTES, off=WS_W1F)
    srd(k, 48, P_WS, F * 4, off=WS_C1)
    srd(k, 52, P_WS, 8 * TB, off=WS_PART)
    srd(k, 56, P_WS, TB, off=WS_HF)
    for i in range(18):
        k(f"s_add_u32 m0, s7, {i * 4096}")
        k(f"buffer_load_dwordx4 v3, {sr(40)}, s6 offen lds")
        if i != 17:
            k(f"s_add_u32 s6, s6, {32 * 4096}")
    k(f"s_add_u32 m0, s7, {P4_C1}")
    k(f"buffer_load_dwordx4 v4, {sr(48)}, s11 offen lds")
    k("s_mul_i32 s10, s8, 18432")
    k("s_add_u32 s10, s10, s9")
    for kk in range(18):
        k(f"buffer_load_dwordx4 {vr(RING + 4 * kk, 4)}, v4, {sr(44)}, s10 offen offset:{(kk % 4) * 1024}")
        if kk % 4 == 3:
            k("s_add_u32 s10, s10, 4096")
    k("v_lshrrev_b32 v5, 4, v2")
    k("v_and_b32 v6, 15, v2")
    k("v_bfe_u32 v7, v2, 2, 2")
    k("v_and_b32 v8, 3, v2")
    k("v_lshl_add_u32 v9, v5, 3, v7")
    k("v_lshlrev_b32 v9, 7, v9")
    k("v_lshl_add_u32 v9, v8, 3, v9")
    k("v_lshrrev_b32 v7, 1, v7")
    k("v_and_b32 v8, 1, v5")
    k("v_lshl_or_b32 v7, v8, 1, v7")
    k(f"v_mul_u32_u24 v10, {P4_HP}, v6")
    k("v_lshl_add_u32 v10, v5, 3, v10")
    k(f"s_mul_i32 s11, s5, 288")
    k(f"s_add_u32 s11, s11, {P4_HID}")
    k("v_lshlrev_b32 v11, 3, v6")
    for ct in range(4):
        k(f"s_add_u32 s12, s5, {ct}")
        k("s_and_b32 s12, s12, 3")
        k("v_xor_b32 v8, s12, v7")
        k(f"v_lshl_add_u32 v{VT + ct}, v8, 5, v9")
        k(f"s_mul_i32 s13, s12, {16 * P4_HP}")
        k("s_add_u32 s13, s13, s11")
        k(f"v_add_u32 v{VH + ct}, s13, v10")
        k("s_lshl_b32 s13, s12, 10")
        k(f"v_add_u32 v{VP + ct}, s13, v4")
        k("s_lshl_b32 s13, s12, 7")
        k(f"s_add_u32 s13, s13, {P4_ST}")
        k(f"v_add_u32 v{12 + ct}, s13, v11")
    k(f"v_lshlrev_b32 v16, 4, v5")
    k(f"s_add_u32 s13, s7, {P4_C1}")
    k(f"v_add_u32 v16, s13, v16")
    for i in range(4):
        k(f"v_mov_b32 v{ONES + i}, 0x3f803f80")
    k("s_waitcnt vmcnt(18)")
    stamp(k, 1)
    k("s_barrier")
    stamp(k, 2)
    lg = Cnt(k, "lgkmcnt", 15)
    last0 = {}

    def stats_mfma(kk):
        lg.need(last0[kk])
        c1 = "0" if kk == 0 else vr(D1, 4)
        c2 = "0" if kk == 0 else vr(D2, 4)
        k(f"v_mfma_f32_16x16x32_bf16 {vr(D1, 4)}, {vr(ONES, 4)}, {breg(kk, 0)}, {c1}")
        k(f"v_mfma_f32_16x16x32_bf16 {vr(D2, 4)}, {breg(kk, 0)}, {breg(kk, 0)}, {c2}")

    for kk in range(18):
        if kk == 16:
            for ct in range(4):
                k(f"v_add_u32 v{VT + ct}, 0x10000, v{VT + ct}")
        for ct in range(4):
            for h in range(2):
                k(f"ds_read_b64_tr_b16 {bhalf(kk, ct, h)}, v{VT + ct} offset:{(kk % 16) * 4096 + 512 * h}")
                o = lg.issue()
            if ct == 0:
                last0[kk] = o
        if kk >= 1:
            stats_mfma(kk - 1)
    stats_mfma(17)
    k(f"s_mul_i32 s12, s4, 73728")
    for kk in range(18):
        l = k.label("hf")
        k(f"s_cmp_lg_u32 s3, {kk & 7}")
        k(f"s_cbranch_scc1 {l}")
        k(f"s_add_u32 s13, s12, {kk * 4096}")
        k(f"buffer_store_dwordx4 {breg(kk, 0)}, v{VP}, {sr(56)}, s13 offen")
        k(f"{l}:")
    k("v_and_b32 v8, 3, v6")
    k("v_cmp_eq_u32 vcc, 1, v8")
    k(f"v_cndmask_b32 v{TMP + 1}, v{D2}, v{D2 + 1}, vcc")
    k("v_cmp_eq_u32 vcc, 2, v8")
    k(f"v_cndmask_b32 v{TMP + 1}, v{TMP + 1}, v{D2 + 2}, vcc")
    k("v_cmp_eq_u32 vcc, 3, v8")
    k(f"v_cndmask_b32 v{TMP + 1}, v{TMP + 1}, v{D2 + 3}, vcc")
    inv = hex(f32bits(1.0 / 576))
    k(f"v_mul_f32 v{TMP}, {inv}, v{D1}")
    k(f"v_mul_f32 v{TMP + 1}, {inv}, v{TMP + 1}")
    k(f"v_fma_f32 v{TMP + 1}, -v{TMP}, v{TMP}, v{TMP + 1}")
    k(f"v_max_f32 v{TMP + 1}, 0, v{TMP + 1}")
    finish_stats(k, TMP, TMP + 1, TMP + 2)
    k("v_lshrrev_b32 v8, 2, v6")
    k("v_cmp_eq_u32 vcc, v8, v5")
    k("s_and_saveexec_b64 s[12:13], vcc")
    k(f"ds_write_b64 v12, {vr(TMP, 2)}")
    k("s_mov_b64 exec, s[12:13]")
    k("s_waitcnt lgkmcnt(0)")
    k("s_mov_b32 s14, 0")
    stamp(k, 3)

    def next_tile():
        k("s_add_u32 s15, s8, 1")
        k("s_cmp_eq_u32 s15, 9")
        k("s_cselect_b32 s15, 0, s15")
        k("s_mul_i32 s10, s15, 18432")
        k("s_add_u32 s10, s10, s9")

    def kloop(N):
        for kk in range(18):
            k(f"s_waitcnt vmcnt({N})")
            for ct in range(4):
                c = "0" if kk == 0 else vr(ACC + 4 * ct, 4)
                k(f"v_mfma_f32_16x16x32_bf16 {vr(ACC + 4 * ct, 4)}, {vr(RING + 4 * kk, 4)}, {breg(kk, ct)}, {c}")
            k(f"buffer_load_dwordx4 {vr(RING + 4 * kk, 4)}, v4, {sr(44)}, s10 offen offset:{(kk % 4) * 1024}")
            if kk % 4 == 3 and kk != 17:
                k("s_add_u32 s10, s10, 4096")

    l1, l1b = k.label("ph1"), k.label("ph1b")
    k(f"{l1}:")
    k("s_cmp_eq_u32 s14, 8")
    k(f"s_cselect_b32 s12, {WF_BYTES}, 0")
    k("s_add_u32 s9, s9, s12")
    next_tile()
    k("s_lshl_b32 s12, s8, 6")
    k(f"v_add_u32 v17, s12, v16")
    k(f"ds_read_b128 {vr(C1R, 4)}, v17")
    k("s_lshl_b32 s12, s8, 5")
    for ct in range(4):
        k(f"v_add_u32 v{VHC + ct}, s12, v{VH + ct}")
    kloop(17)
    k("s_cmp_lg_u32 s14, 0")
    k(f"s_cbranch_scc1 {l1b}")
    k("s_barrier")
    for ct in range(4):
        k(f"ds_read_b64 {vr(MR + 2 * ct, 2)}, v{12 + ct}")
    stamp(k, 4)
    k(f"{l1b}:")
    k("s_waitcnt lgkmcnt(0)")
    for ct in range(4):
        a = ACC + 4 * ct
        t = TMP + 4 * (ct % 2)
        for r in range(4):
            k(f"v_fma_f32 v{a + r}, -v{MR + 2 * ct}, v{C1R + r}, v{a + r}")
        k(f"v_cvt_pk_bf16_f32 v{t}, v{a}, v{a + 1}")
        k(f"v_cvt_pk_bf16_f32 v{t + 1}, v{a + 2}, v{a + 3}")
        k(f"v_pk_max_i16 v{t}, v{t}, 0")
        k(f"v_pk_max_i16 v{t + 1}, v{t + 1}, 0")
        k(f"ds_write_b64 v{VHC + ct}, {vr(t, 2)}")
    k("s_mov_b32 s8, s15")
    k("s_add_u32 s14, s14, 1")
    k("s_cmp_lt_u32 s14, 9")
    k(f"s_cbranch_scc1 {l1}")
    k("s_waitcnt lgkmcnt(0)")
    stamp(k, 5)
    k("s_barrier")
    stamp(k, 6)
    k("s_mul_i32 s12, s5, 288")
    k("v_lshlrev_b32 v8, 3, v5")
    k("v_subrev_u32 v8, s12, v8")
    for ct in range(4):
        k(f"v_add_u32 v{VH + ct}, v8, v{VH + ct}")
    for kk in range(18):
        for ct in range(4):
            k(f"ds_read_b128 {breg(kk, ct)}, v{VH + ct} offset:{64 * kk}")
    k(f"s_mul_i32 s16, s3, {TB}")
    k(f"s_mul_i32 s17, s4, 73728")
    k("s_add_u32 s16, s16, s17")
    k("s_lshr_b32 s17, s5, 1")
    k("s_add_u32 s17, s17, 16")
    k("s_lshl_b32 s17, s17, 12")
    k("s_and_b32 s18, s5, 1")
    k("s_lshl_b32 s18, s18, 3")
    k("s_add_u32 s17, s17, s18")
    k("s_lshl_b32 s18, s5, 14")
    k("s_waitcnt lgkmcnt(0)")
    stamp(k, 7)
    l2 = k.label("ph2")
    k(f"{l2}:")
    next_tile()
    k("s_cmp_eq_u32 s14, 17")
    k("s_cselect_b32 s10, 0x7f000000, s10")
    k("s_lshr_b32 s12, s8, 1")
    k("s_lshl_b32 s12, s12, 12")
    k("s_and_b32 s13, s8, 1")
    k("s_lshl_b32 s13, s13, 3")
    k("s_add_u32 s12, s12, s13")
    k("s_add_u32 s12, s12, s18")
    k("s_cmp_eq_u32 s8, 8")
    k("s_cselect_b32 s12, s17, s12")
    k("s_add_u32 s12, s12, s16")
    kloop(17)
    for ct in range(4):
        a = ACC + 4 * ct
        t = TMP + 2 * ct
        for r in range(4):
            k(f"v_mul_f32 v{a + r}, v{MR + 2 * ct + 1}, v{a + r}")
        k(f"v_cvt_pk_bf16_f32 v{t}, v{a}, v{a + 1}")
        k(f"v_cvt_pk_bf16_f32 v{t + 1}, v{a + 2}, v{a + 3}")
        k(f"buffer_store_dwordx2 {vr(t, 2)}, v{VP + ct}, {sr(52)}, s12 offen")
    k("s_mov_b32 s8, s15")
    k("s_add_u32 s14, s14, 1")
    k("s_cmp_lt_u32 s14, 18")
    k(f"s_cbranch_scc1 {l2}")
    stamp(k, 8)
    if INSTR:
        k("s_waitcnt vmcnt(0)")
    stamp(k, 9)
    k(f"{l_end}:")
    k("s_endpgm")
    return k, 256


def p5_kernel():
    k = Kernel("p5_reduce_kernel")
    load_kernargs(k)
    l_end = k.label("end")
    k("s_cmp_ge_u32 s2, 576")
    k(f"s_cbranch_scc1 {l_end}")
    k("s_mul_i32 s3, s2, 3641")
    k("s_lshr_b32 s3, s3, 16")
    k("s_mul_i32 s4, s3, 18")
    k("s_sub_u32 s4, s2, s4")
    k("v_lshlrev_b32 v1, 4, v0")
    k("s_lshl_b32 s5, s2, 12")
    k("s_waitcnt lgkmcnt(0)")
    stamp_init(k, 3, 60)
    stamp(k, 0)
    srd(k, 40, P_WS, 8 * TB, off=WS_PART)
    srd(k, 44, P_WS, TB, off=WS_HF)
    srd(k, 48, P_OUT, TB)
    k("s_mov_b32 s6, s5")
    for j in range(8):
        k(f"buffer_load_dwordx4 {vr(8 + 4 * j, 4)}, v1, {sr(40)}, s6 offen")
        if j != 7:
            k(f"s_add_u32 s6, s6, {TB}")
    k(f"buffer_load_dwordx4 {vr(40, 4)}, v1, {sr(44)}, s5 offen")
    k("v_lshrrev_b32 v2, 6, v0")
    k("v_and_b32 v3, 15, v0")
    k("v_lshl_add_u32 v2, v2, 4, v3")
    k("v_mul_u32_u24 v2, 1152, v2")
    k("v_bfe_u32 v3, v0, 4, 2")
    k("v_lshl_add_u32 v2, v3, 4, v2")
    k(f"s_mul_i32 s6, s3, {64 * 1152}")
    k("s_lshl_b32 s7, s4, 6")
    k("s_add_u32 s6, s6, s7")
    A, T = 44, 52
    for j in range(8):
        k(f"s_waitcnt vmcnt({8 - j})")
        for i in range(4):
            if j == 0:
                unpack(k, A + 2 * i, A + 2 * i + 1, 8 + i)
            else:
                unpack(k, T, T + 1, 8 + 4 * j + i)
                k(f"v_pk_add_f32 {vr(A + 2 * i, 2)}, {vr(A + 2 * i, 2)}, {vr(T, 2)}")
    k("s_waitcnt vmcnt(0)")
    stamp(k, 1)
    for i in range(4):
        round_pair(k, A + 2 * i, T + 2)
        unpack(k, T, T + 1, 40 + i)
        k(f"v_pk_add_f32 {vr(A + 2 * i, 2)}, {vr(A + 2 * i, 2)}, {vr(T, 2)}")
        k(f"v_cvt_pk_bf16_f32 v{4 + i}, v{A + 2 * i}, v{A + 2 * i + 1}")
    k(f"buffer_store_dwordx4 {vr(4, 4)}, v2, {sr(48)}, s6 offen")
    if INSTR:
        k("s_waitcnt vmcnt(0)")
    stamp(k, 2)
    k(f"{l_end}:")
    k("s_endpgm")
    return k, 576


def build(kernels, path):
    head = open(os.path.join(os.path.dirname(os.path.abspath(__file__)), "..", "cdna_kernels", NAME + ".s.ref")).read()
    head = [l for l in head.split("\n") if l.startswith(";") and "@launch" not in l]
    out = list(head)
    texts, descs = [], []
    for k, grid, block, lds in kernels:
        n = k.fix_hazards()
        t, d = k.emit()
        texts.append(t)
        descs.append(d)
        out.append(f"; @launch kernel={k.name} grid=({grid},1,1) block=({block},1,1) lds={lds}")
        print(f"{k.name}: {len(k.lines)} lines, {n} nops added, regs (v,a,s,nfv)={k.stats}")
    out.append('.amdgcn_target "amdgcn-amd-amdhsa--gfx950"')
    out.append(".text")
    out += texts
    out.append('.section .rodata,"a"')
    for d in descs:
        out.append(".p2align 6")
        out.append(d)
    open(path, "w").write("\n".join(out) + "\n")


if __name__ == "__main__":
    ks = []
    k1, g1 = p1_kernel()
    ks.append((k1, g1, 256, 73728))
    k2, g2 = p2_kernel()
    ks.append((k2, g2, 256, P2_LDS))
    k4, g4 = p4_kernel()
    ks.append((k4, g4, 256, P4_LDS))
    k5, g5 = p5_kernel()
    ks.append((k5, g5, 256, 0))
    path = sys.argv[1] if len(sys.argv) > 1 else os.path.join(os.path.dirname(os.path.abspath(__file__)), "..", "cdna_kernels", NAME + ".s")
    build(ks, path)
```
